```python
import torch

def _softmax(x, axis=-1):
    return torch.softmax(x, dim=axis)

def _gelu(x):
    return torch.nn.functional.gelu(x, approximate='tanh')

def _silu(x):
    return torch.nn.functional.silu(x)

def _sigmoid(x):
    return torch.sigmoid(x)

def _layernorm(x, axis=-1, eps=1e-05):
    m = x.mean(dim=axis, keepdim=True)
    v = x.var(dim=axis, keepdim=True, unbiased=False)
    return (x - m) / torch.sqrt(v + eps)

def _scatter_add(tgt, idx, src, axis=0):
    return tgt.clone().index_add_(axis, idx, src)

def _segment_sum(src, seg, n):
    out = torch.zeros((n,) + src.shape[1:], dtype=src.dtype)
    return out.index_add_(0, seg, src)

def _pad(x, pw):
    flat = tuple((v for pair in reversed(pw) for v in pair))
    return torch.nn.functional.pad(x, flat)
kernel_name = 'adaLN_cond__grouped_kv_mqa__mixer_channel_mlp__prompt'

def setup_inputs():

    _w = lambda a: (lambda t: t.to(torch.bfloat16) if t.is_floating_point() else t)(torch.as_tensor(a))

    def _A_setup():
        B, S, D, H = (1, 2048, 640, 32)
        Dh = D // H
        return {'x': _w((lambda *s: torch.randn(*s, dtype=torch.bfloat16) * 0.05)(B, S, D)), 'wq': _w((lambda *s: torch.randn(*s, dtype=torch.bfloat16) * 0.05)(D, H * Dh)), 'wk': _w((lambda *s: torch.randn(*s, dtype=torch.bfloat16) * 0.05)(D, Dh)), 'wv': _w((lambda *s: torch.randn(*s, dtype=torch.bfloat16) * 0.05)(D, Dh)), 'wo': _w((lambda *s: torch.randn(*s, dtype=torch.bfloat16) * 0.05)(H * Dh, D))}
    _A_in = _A_setup()

    def _B_setup():
        B, S, D, F = (1, 2048, 640, 1728)
        return {'x': _w((lambda *s: torch.randn(*s, dtype=torch.bfloat16) * 0.05)(B, S, D)), 'w1': _w((lambda *s: torch.randn(*s, dtype=torch.bfloat16) * 3.2)(D, F) * D ** (-0.5)), 'b1': _w((lambda *s: torch.randn(*s, dtype=torch.bfloat16) * 0.8)(F)), 'w2': _w((lambda *s: torch.randn(*s, dtype=torch.bfloat16) * 3.2)(F, D) * F ** (-0.5)), 'b2': _w((lambda *s: torch.randn(*s, dtype=torch.bfloat16) * 3.2)(D))}
    _B_in = _B_setup()
    return {'A_x': _A_in['x'], 'A_wq': _A_in['wq'], 'A_wk': _A_in['wk'], 'A_wv': _A_in['wv'], 'A_wo': _A_in['wo'], 'B_x': _B_in['x'], 'B_w1': _B_in['w1'], 'B_b1': _B_in['b1'], 'B_w2': _B_in['w2'], 'B_b2': _B_in['b2'], 'c': _w((lambda *s: torch.randn(*s, dtype=torch.bfloat16) * 0.1)(1, 640) * 8.0), 'w_mod': _w((lambda *s: torch.randn(*s, dtype=torch.bfloat16) * 0.1)(640, 6 * 640) * 640 ** (-0.5) * 8.0)}

def reference(A_x, A_wq, A_wk, A_wv, A_wo, B_x, B_w1, B_b1, B_w2, B_b2, c, w_mod):

    def _A_ref(x, wq, wk, wv, wo):
        B, S, D = x.shape
        H = 32
        Dh = D // H
        q = (lambda x, *d: x.permute(*d))((x @ wq).reshape(B, S, H, Dh), 0, 2, 1, 3)
        k = x @ wk
        v = x @ wv
        scores = torch.einsum('bhqd,bkd->bhqk', q, k) * Dh ** (-0.5)
        p = _softmax(scores, axis=-1)
        o = torch.einsum('bhqk,bkd->bhqd', p, v)
        return (lambda x, *d: x.permute(*d))(o, 0, 2, 1, 3).reshape(B, S, H * Dh) @ wo

    def _B_ref(x, w1, b1, w2, b2):
        y = _layernorm(x, axis=-1)
        h = _gelu(torch.einsum('bsd,df->bsf', y, w1) + b1)
        return torch.einsum('bsf,fd->bsd', h, w2) + b2
    x = A_x
    mod = (_silu(c) @ w_mod).reshape(c.shape[0], 6, 1, -1)
    sa, ca, ga, sb, cb, gb = (mod[:, 0].clone(), mod[:, 1].clone(), mod[:, 2].clone(), mod[:, 3].clone(), mod[:, 4].clone(), mod[:, 5].clone())
    h = _layernorm(x, axis=-1) * (1 + ca) + sa
    x = x + ga * _A_ref(h, A_wq, A_wk, A_wv, A_wo)
    h = _layernorm(x, axis=-1) * (1 + cb) + sb
    x = x + gb * _B_ref(h, B_w1, B_b1, B_w2, B_b2)
    return x
```

```python
import re

REG_RE = re.compile(r"^(-|abs\()?([vsa])(\d+)\)?$")
RNG_RE = re.compile(r"^(-|abs\()?([vsa])\[(\d+):(\d+)\]\)?$")

TRANS = ("v_exp_f32", "v_log_f32", "v_rcp_f32", "v_rsq_f32", "v_sqrt_f32", "v_sin_f32", "v_cos_f32",
         "v_exp_f16", "v_rcp_f16")


def regs_of(tok):
    tok = tok.strip()
    m = REG_RE.match(tok)
    if m:
        return [(m.group(2), int(m.group(3)))]
    m = RNG_RE.match(tok)
    if m:
        return [(m.group(2), i) for i in range(int(m.group(3)), int(m.group(4)) + 1)]
    if tok in ("vcc",):
        return [("vcc", 0), ("vcc", 1)]
    if tok in ("vcc_lo",):
        return [("vcc", 0)]
    if tok in ("vcc_hi",):
        return [("vcc", 1)]
    if tok == "exec":
        return [("exec", 0), ("exec", 1)]
    if tok == "exec_lo":
        return [("exec", 0)]
    if tok == "exec_hi":
        return [("exec", 1)]
    if tok == "m0":
        return [("m0", 0)]
    return []


class Ins:
    __slots__ = ("text", "op", "dst", "src", "cls", "passes", "srcC", "srcAB", "mods", "label", "target", "cnt")

    def __init__(self, text):
        self.text = text
        t = text.split(";")[0].strip()
        self.label = None
        self.target = None
        self.dst = []
        self.src = []
        self.srcC = []
        self.srcAB = []
        self.passes = 0
        self.cnt = {}
        if t.endswith(":"):
            self.label = t[:-1]
            self.op = "label"
            self.cls = "label"
            self.mods = ""
            return
        parts = t.split(None, 1)
        op = parts[0]
        self.op = op
        rest = parts[1] if len(parts) > 1 else ""
        ops = []
        depth = 0
        cur = ""
        for ch in rest:
            if ch in "[(":
                depth += 1
            if ch in "])":
                depth -= 1
            if ch == "," and depth == 0:
                ops.append(cur.strip())
                cur = ""
            else:
                cur += ch
        last = cur.strip()
        mods = ""
        if last:
            lp = last.split(None, 1)
            ops.append(lp[0])
            if len(lp) > 1:
                mods = lp[1]
        self.mods = mods
        R = [regs_of(o) for o in ops]
        if op.startswith("v_mfma"):
            self.cls = "mfma"
            self.dst = R[0]
            self.srcAB = R[1] + R[2]
            self.srcC = R[3]
            self.src = self.srcAB + self.srcC
            self.passes = 8 if "32x32" in op else 4
        elif op.startswith("ds_read") or op.startswith("ds_bpermute") or op.startswith("ds_swizzle"):
            self.cls = "ds"
            self.dst = R[0]
            self.src = sum(R[1:], [])
            self.cnt = {"lgkm": 1}
        elif op.startswith("ds_write"):
            self.cls = "ds"
            self.src = sum(R, [])
            self.cnt = {"lgkm": 1}
        elif op.startswith("buffer_load") or op.startswith("global_load"):
            self.cls = "vmem"
            if " lds" in (" " + mods) or op.startswith("global_load_lds"):
                self.src = sum(R, []) + [("m0", 0)]
            else:
                self.dst = R[0]
                self.src = sum(R[1:], [])
            self.cnt = {"vm": 1}
        elif op.startswith("buffer_store") or op.startswith("global_store") or op.startswith("buffer_atomic") \
                or op.startswith("global_atomic"):
            self.cls = "vmem"
            self.src = sum(R, [])
            self.cnt = {"vm": 1}
        elif op.startswith("buffer_wbl2") or op.startswith("buffer_inv"):
            self.cls = "vmem"
            self.cnt = {"vm": 1}
        elif op.startswith("s_load") or op.startswith("s_memtime") or op.startswith("s_memrealtime"):
            self.cls = "smem"
            self.dst = R[0]
            self.src = sum(R[1:], [])
            self.cnt = {"lgkm": 1}
        elif op in ("s_waitcnt", "s_barrier", "s_nop", "s_endpgm", "s_setprio", "s_sleep"):
            self.cls = "ctl"
        elif op.startswith("s_cbranch") or op == "s_branch":
            self.cls = "branch"
            self.target = ops[0]
            if "vcc" in op:
                self.src = [("vcc", 0), ("vcc", 1)]
            if "exec" in op:
                self.src = [("exec", 0), ("exec", 1)]
        elif op.startswith("s_cmp") or op.startswith("s_bitcmp"):
            self.cls = "salu"
            self.src = sum(R, [])
        elif op.startswith("s_"):
            self.cls = "salu"
            self.dst = R[0] if R else []
            self.src = sum(R[1:], [])
            if "saveexec" in op:
                self.dst = self.dst + [("exec", 0), ("exec", 1)]
                self.src = self.src + [("exec", 0), ("exec", 1)]
            if op in ("s_addk_i32", "s_mulk_i32"):
                self.src = self.src + R[0]
        elif op.startswith("v_"):
            self.cls = "valu"
            if op.startswith("v_cmp"):
                self.dst = R[0]
                self.src = sum(R[1:], [])
            elif op.startswith("v_permlane32_swap") or op.startswith("v_permlane16_swap") or op.startswith("v_swap"):
                self.dst = R[0] + R[1]
                self.src = R[0] + R[1]
            elif op.startswith("v_add_co") or op.startswith("v_sub_co") or op.startswith("v_addc_co") \
                    or op.startswith("v_subb_co"):
                self.dst = R[0] + R[1]
                self.src = sum(R[2:], [])
            else:
                self.dst = R[0]
                self.src = sum(R[1:], [])
                if op.startswith("v_fmac") or op.startswith("v_dot2c") or op.startswith("v_pk_fmac") \
                        or op.startswith("v_writelane"):
                    self.src = self.src + R[0]
                if op.startswith("v_cndmask") and len(ops) == 3:
                    self.src = self.src + [("vcc", 0), ("vcc", 1)]
        else:
            raise ValueError("unknown instruction: " + text)

    def slots(self):
        if self.op == "s_nop":
            return int(self.text.split(";")[0].split()[1], 0) + 1
        if self.cls == "label":
            return 0
        return 1


def isvg(r):
    return r[0] in ("v", "a")


def issg(r):
    return r[0] in ("s", "vcc")


class Kernel:
    def __init__(self, name):
        self.name = name
        self.ins = []
        self.uid = 0

    def __call__(self, text):
        for line in text.strip().split("\n"):
            line = line.strip()
            if not line or line.startswith(";"):
                continue
            self.ins.append(Ins(line))

    def label(self, l):
        self.ins.append(Ins(l + ":"))

    def newlabel(self, base):
        self.uid += 1
        return f"L_{self.name}_{base}_{self.uid}"

    def text(self):
        out = []
        for i in self.ins:
            out.append(i.text if i.cls == "label" else "    " + i.text)
        return "\n".join(out)

    def maxreg(self, kind):
        m = -1
        for i in self.ins:
            for r in i.dst + i.src:
                if r[0] == kind:
                    m = max(m, r[1])
        return m

    def traces(self, max_traces=64):
        labels = {i.label: n for n, i in enumerate(self.ins) if i.label}
        res = []
        stack = [(0, [], {})]
        while stack and len(res) < max_traces:
            pc, tr, taken = stack.pop()
            tr = list(tr)
            while pc < len(self.ins):
                i = self.ins[pc]
                tr.append(pc)
                if i.op == "s_endpgm":
                    break
                if i.cls == "branch":
                    tgt = labels[i.target]
                    c = taken.get(pc, 0)
                    if i.op == "s_branch":
                        if tgt <= pc and c >= 2:
                            break
                        taken = dict(taken)
                        taken[pc] = c + 1
                        pc = tgt
                        continue
                    if tgt <= pc:
                        if c < 2:
                            taken = dict(taken)
                            taken[pc] = c + 1
                            pc = tgt
                            continue
                    else:
                        if c < 1 or True:
                            t2 = dict(taken)
                            t2[pc] = c + 1
                            if c < 2:
                                stack.append((tgt, tr, t2))
                pc += 1
            res.append(tr)
        return res

    def check(self, verbose=True):
        errs = set()
        for tr in self.traces():
            self._check_trace(tr, errs)
        for e in sorted(errs):
            print(f"[{self.name}] HAZARD: {e}")
        return not errs

    def _check_trace(self, tr, errs):
        ins = self.ins
        pos = 0
        lastw = {}
        lastC = {}
        wide_store = {}
        vmq = []
        lgq = []
        smem_out = False
        pending = {}
        idc = 0
        for pc in tr:
            i = ins[pc]
            if i.cls == "label":
                continue

            def need(r, n, why, prod):
                p, pi = prod
                d = pos - p
                if d < n:
                    errs.add(f"{why}: need {n} have {d}: [{pi.text}] -> [{i.text}]")

            if i.op == "s_waitcnt":
                m = re.search(r"vmcnt\((\d+)\)", i.text)
                if m:
                    n = int(m.group(1))
                    while len(vmq) > n:
                        d = vmq.pop(0)
                        for r in d[0]:
                            if pending.get(r) == ("vm", d[1]):
                                del pending[r]
                m = re.search(r"lgkmcnt\((\d+)\)", i.text)
                if m:
                    n = int(m.group(1))
                    if any(x[2] for x in lgq) and n != 0:
                        pass
                    else:
                        while len(lgq) > n:
                            d = lgq.pop(0)
                            for r in d[0]:
                                if pending.get(r) == ("lgkm", d[1]):
                                    del pending[r]
            for r in i.src + i.dst:
                if r in pending and not (i.cls in ("vmem", "ds") and r in i.dst and r not in i.src and
                                         pending[r][0] == ("vm" if i.cls == "vmem" else "lgkm")):
                    errs.add(f"WAITCNT: reg {r} still loading ({pending[r][0]}) at [{i.text}] pc={pc}")
            for r in i.src:
                if r not in lastw:
                    continue
                p, pi = lastw[r]
                if pi.cls == "mfma" and isvg(r):
                    P = pi.passes
                    if i.cls == "mfma":
                        if r in i.srcC and r not in i.srcAB:
                            same = (i.srcC == pi.dst) and i.passes == pi.passes
                            need(r, 0 if same else {4: 6, 8: 10}[P], "mfmaD->mfmaC", lastw[r])
                        else:
                            need(r, {4: 8, 8: 12}[P], "mfmaD->mfmaAB", lastw[r])
                    else:
                        need(r, {4: 8, 8: 12}[P], "mfmaD->read", lastw[r])
                if pi.cls == "valu":
                    if i.cls == "mfma" and isvg(r):
                        need(r, 2, "valu->mfma", lastw[r])
                    if pi.op.split("_e")[0] in TRANS and i.cls == "valu" and i.op.split("_e")[0] not in TRANS:
                        need(r, 1, "trans->valu", lastw[r])
                    if pi.op in TRANS and i.cls in ("mfma",):
                        need(r, 2, "trans->mfma", lastw[r])
                    if pi.op.startswith("v_dot"):
                        if not (i.op == pi.op and False):
                            need(r, 3, "dot->use", lastw[r])
                    if issg(r):
                        if i.cls == "valu":
                            need(r, 4 if i.op.startswith(("v_readlane", "v_writelane")) else 2, "valu sgpr->valu", lastw[r])
                        if i.cls == "vmem":
                            need(r, 5, "valu sgpr->vmem", lastw[r])
                        if i.cls == "branch":
                            need(r, 5, "valu vcc->branch", lastw[r])
                    if isvg(r) and i.op.startswith(("v_readfirstlane", "v_readlane")):
                        need(r, 1, "valu->readlane", lastw[r])
                    if isvg(r) and (i.op.startswith("v_permlane") or "row_" in i.mods or "quad_perm" in i.mods
                                    or "dpp" in i.op):
                        need(r, 2, "valu->dpp/permlane", lastw[r])
                if pi.cls == "salu" and r == ("m0", 0) and i.cls == "vmem":
                    need(r, 1, "m0->ldsdma", lastw[r])
            for r in i.dst:
                if r in lastw:
                    p, pi = lastw[r]
                    if pi.cls == "mfma" and isvg(r) and i.cls != "mfma":
                        need(r, {4: 8, 8: 12}[pi.passes], "mfmaD->write", lastw[r])
                    if pi.cls == "mfma" and isvg(r) and i.cls == "mfma" and not (r in i.srcC):
                        need(r, {4: 6, 8: 10}[pi.passes], "mfmaD->mfmaD WAW", lastw[r])
                    if pi.cls == "valu" and pi.op.startswith("v_dot") and not i.op == pi.op:
                        need(r, 3, "dot->waw", lastw[r])
                if r in lastC and i.cls == "valu":
                    p, pi = lastC[r]
                    need(r, {4: 3, 8: 7}[pi.passes], "mfmaC WAR", lastC[r])
                if r in wide_store and i.cls in ("valu", "mfma"):
                    need(r, 2, "widestore WAR", wide_store[r])
            pos += i.slots()
            for r in i.dst:
                lastw[r] = (pos, i)
            if i.cls == "mfma":
                for r in i.srcC:
                    lastC[r] = (pos, i)
            if i.cls == "vmem" and "store" in i.op and ("x4" in i.op or "x3" in i.op):
                for r in i.src:
                    if isvg(r):
                        wide_store[r] = (pos, i)
            if "vm" in i.cnt:
                idc += 1
                vmq.append((i.dst, idc))
                for r in i.dst:
                    pending[r] = ("vm", idc)
                if len(vmq) > 63:
                    d = vmq.pop(0)
                    for r in d[0]:
                        if pending.get(r) == ("vm", d[1]):
                            del pending[r]
            if "lgkm" in i.cnt:
                idc += 1
                lgq.append((i.dst, idc, i.cls == "smem"))
                for r in i.dst:
                    pending[r] = ("lgkm", idc)


def descriptor(k, vgpr=None, agpr=0, sgpr=None):
    nv = k.maxreg("v") + 1 if vgpr is None else vgpr
    na = max(agpr, k.maxreg("a") + 1)
    acc = max(4, (nv + 3) // 4 * 4)
    total = acc + na if na else nv
    ns = max(k.maxreg("s") + 1, 16) if sgpr is None else sgpr
    return f""".p2align 6
.amdhsa_kernel {k.name}
  .amdhsa_next_free_vgpr {total}
  .amdhsa_next_free_sgpr {ns}
  .amdhsa_accum_offset {acc}
  .amdhsa_group_segment_fixed_size 0
  .amdhsa_kernarg_size 120
  .amdhsa_user_sgpr_count 2
  .amdhsa_user_sgpr_kernarg_segment_ptr 1
  .amdhsa_system_sgpr_workgroup_id_x 1
.end_amdhsa_kernel
"""
```

```python
import sys, os
sys.path.insert(0, os.path.dirname(os.path.abspath(__file__)))
from asmlib import Kernel, descriptor

NAME = "adaLN_cond__grouped_kv_mqa__mixer_channel_mlp__prompt"
A_X, A_WQ, A_WK, A_WV, A_WO, B_X, B_W1, B_B1, B_W2, B_B2, C_, W_MOD, OUT, DBG, WS = [8 * i for i in range(15)]
MODF = 0x0000000
M1T = 0x0008000
WKV = 0x0010000
XH = 0x0100000
QQ = 0x0400000
KVI = 0x0700000
KN = 0x0730000
OF = 0x0800000
X1F = 0x0B00000
ZF = 0x0E00000
ST = 0x1100000
UF = 0x1200000
GRAM = 0x1210000
GF = 0x1220000
HF = 0x1300000
WS_BYTES = 0x1A00000

LOG2E = 1.4426950408889634
STAMP = int(os.environ.get("STAMP", "0"))
STB = 0x1A00000
if STAMP:
    WS_BYTES = 0x1C00000


def stamp(k, idx, kid):
    if not STAMP:
        return
    k(f"s_memrealtime s[{80+2*idx}:{81+2*idx}]")


def stamp_flush(k, kid, n, wavereg="s3"):
    if not STAMP:
        return
    k(f"""
    s_waitcnt lgkmcnt(0) vmcnt(0)
    s_memrealtime s[{80+2*n}:{81+2*n}]
    s_mov_b32 s76, s4
    s_mov_b32 s77, s5
    s_mov_b32 s78, {WS_BYTES}
    s_mov_b32 s79, 0x20000
    s_lshl_b32 s75, s2, 3
    s_add_u32 s75, s75, {wavereg}
    s_lshl_b32 s75, s75, 5
    s_add_u32 s75, s75, {STB + kid*0x20000}
    s_mov_b64 exec, 1
    v_mov_b32 v0, 0
    s_waitcnt lgkmcnt(0)
    """)
    for i in range(n + 1):
        k(f"v_mov_b32 v1, s{80+2*i}")
        k(f"buffer_store_dword v1, v0, s[76:79], s75 offen offset:{4*i}")


def f32hex(x):
    import struct
    return "0x%08x" % struct.unpack("<I", struct.pack("<f", x))[0]


def srd(k, d, base, nrec):
    if d != base:
        k(f"s_mov_b32 s{d}, s{base}")
        k(f"s_mov_b32 s{d+1}, s{base+1}")
    k(f"s_mov_b32 s{d+2}, {nrec}")
    k(f"s_mov_b32 s{d+3}, 0x20000")


def half_sum(k, a, t):
    k(f"v_mov_b32 v{t}, v{a}")
    k("s_nop 1")
    k(f"v_permlane32_swap_b32 v{a}, v{t}")
    k(f"v_add_f32 v{a}, v{a}, v{t}")


def tr_lane_addr(k, dst, lane, t0, t1, rowbytes, T=None, Treg=None):
    k(f"v_bfe_u32 v{t0}, v{lane}, 2, 2")
    k(f"v_lshrrev_b32 v{t1}, 5, v{lane}")
    k(f"v_lshl_add_u32 v{t1}, v{t1}, 3, v{t0}")
    k(f"v_mul_u32_u24 v{dst}, {rowbytes}, v{t1}")
    if rowbytes == 128:
        k(f"v_lshrrev_b32 v{t0}, 1, v{t0}")
    if Treg is not None:
        k(f"v_xor_b32 v{t0}, {Treg}, v{t0}")
    else:
        k(f"v_xor_b32 v{t0}, {T}, v{t0}")
    k(f"v_lshl_add_u32 v{dst}, v{t0}, 6, v{dst}")
    k(f"v_bfe_u32 v{t0}, v{lane}, 4, 1")
    k(f"v_lshl_add_u32 v{dst}, v{t0}, 5, v{dst}")
    k(f"v_and_b32 v{t0}, 1, v{lane}")
    k(f"v_lshl_add_u32 v{dst}, v{t0}, 4, v{dst}")
    k(f"v_bfe_u32 v{t0}, v{lane}, 1, 1")
    k(f"v_lshl_add_u32 v{dst}, v{t0}, 3, v{dst}")


def dma_lane_off(k, dst, lane, t0, t1, rowbytes, gstride_sreg_or_imm):
    if rowbytes == 128:
        k(f"v_lshrrev_b32 v{t0}, 3, v{lane}")
        k(f"v_bfe_u32 v{t1}, v{lane}, 4, 1")
        k(f"v_lshlrev_b32 v{t1}, 2, v{t1}")
        k(f"v_and_b32 v{dst}, 7, v{lane}")
    else:
        k(f"v_lshrrev_b32 v{t0}, 4, v{lane}")
        k(f"v_lshlrev_b32 v{t1}, 2, v{t0}")
        k(f"v_and_b32 v{dst}, 15, v{lane}")
    k(f"v_xor_b32 v{dst}, v{dst}, v{t1}")
    k(f"v_lshlrev_b32 v{dst}, 4, v{dst}")
    k(f"v_mad_u32_u24 v{dst}, v{t0}, {gstride_sreg_or_imm}, v{dst}")


def gen_k0():
    k = Kernel("k0_kernel")
    SC = 0
    RED = 2048
    WB = 4096
    k(f"""
    s_cmp_ge_u32 s2, 127
    s_cbranch_scc1 L_k0_end
    s_load_dwordx2 s[4:5], s[0:1], {WS}
    v_and_b32 v1, 63, v0
    v_lshrrev_b32 v2, 6, v0
    s_nop 0
    v_readfirstlane_b32 s3, v2
    s_cmp_ge_u32 s2, 64
    s_cbranch_scc1 L_k0_notln
    """)
    k(f"""
    s_load_dwordx2 s[8:9], s[0:1], {A_X}
    s_and_b32 s16, s2, 7
    s_lshl_b32 s16, s16, 3
    s_lshr_b32 s17, s2, 3
    s_add_u32 s16, s16, s17            ; tile
    s_mul_i32 s17, s16, 40960
    s_mul_i32 s18, s3, 160
    s_add_u32 s17, s17, s18
    v_and_b32 v3, 31, v1               ; tok
    v_lshrrev_b32 v4, 5, v1            ; h
    v_mul_u32_u24 v5, 1280, v3
    v_lshl_add_u32 v5, v4, 4, v5
    s_waitcnt lgkmcnt(0)
    """)
    srd(k, 8, 8, 2621440)
    srd(k, 12, 4, WS_BYTES)
    for i in range(5):
        k(f"buffer_load_dwordx4 v[{10+4*i}:{13+4*i}], v5, s[8:11], s17 offen offset:{32*i}")
    k(f"""
    v_lshlrev_b32 v6, 5, v3
    s_lshl_b32 s19, s3, 2
    v_add_u32 v7, s19, v6
    s_mul_i32 s20, s16, 40960
    s_mul_i32 s21, s3, 5120
    s_add_u32 s20, s20, s21
    s_add_u32 s20, s20, {XH}
    v_lshlrev_b32 v8, 4, v1
    """)
    for i in range(5):
        k(f"s_waitcnt vmcnt({4-i})")
        for j in range(4):
            r = 10 + 4 * i + j
            d = 30 + 8 * i + 2 * j
            k(f"v_lshlrev_b32 v{d}, 16, v{r}")
            k(f"v_and_b32 v{d+1}, 0xffff0000, v{r}")
    for a in range(4):
        k(f"v_add_f32 v{70+a}, v{30+a}, v{34+a}")
    for b in range(2, 10):
        for a in range(4):
            k(f"v_add_f32 v{70+a}, v{70+a}, v{30+4*b+a}")
    k("v_add_f32 v70, v70, v71\nv_add_f32 v72, v72, v73\nv_add_f32 v70, v70, v72")
    half_sum(k, 70, 71)
    k(f"""
    ds_write_b32 v7, v70
    s_waitcnt lgkmcnt(0)
    s_barrier
    ds_read_b128 v[72:75], v6
    ds_read_b128 v[76:79], v6 offset:16
    s_waitcnt lgkmcnt(0)
    v_add_f32 v72, v72, v73
    v_add_f32 v74, v74, v75
    v_add_f32 v76, v76, v77
    v_add_f32 v78, v78, v79
    v_add_f32 v72, v72, v74
    v_add_f32 v76, v76, v78
    v_add_f32 v72, v72, v76
    v_mul_f32 v72, {f32hex(1.0/640)}, v72
    """)
    for e in range(40):
        k(f"v_sub_f32 v{30+e}, v{30+e}, v72")
    for a in range(4):
        k(f"v_mul_f32 v{70+a if a != 2 else 74}, v{30+a}, v{30+a}")
    acc = [70, 71, 74, 73]
    for b in range(1, 10):
        for a in range(4):
            k(f"v_fmac_f32 v{acc[a]}, v{30+4*b+a}, v{30+4*b+a}")
    k("v_add_f32 v70, v70, v71\nv_add_f32 v74, v74, v73\nv_add_f32 v70, v70, v74")
    half_sum(k, 70, 71)
    k(f"""
    ds_write_b32 v7, v70 offset:1024
    s_waitcnt lgkmcnt(0)
    s_barrier
    ds_read_b128 v[72:75], v6 offset:1024
    ds_read_b128 v[76:79], v6 offset:1040
    s_waitcnt lgkmcnt(0)
    v_add_f32 v72, v72, v73
    v_add_f32 v74, v74, v75
    v_add_f32 v76, v76, v77
    v_add_f32 v78, v78, v79
    v_add_f32 v72, v72, v74
    v_add_f32 v76, v76, v78
    v_add_f32 v72, v72, v76
    v_mov_b32 v73, {f32hex(1e-5)}
    v_fmac_f32 v73, {f32hex(1.0/640)}, v72
    v_rsq_f32 v73, v73
    s_nop 0
    """)
    for i in range(5):
        for j in range(4):
            d = 30 + 8 * i + 2 * j
            k(f"v_mul_f32 v{d}, v{d}, v73")
            k(f"v_mul_f32 v{d+1}, v{d+1}, v73")
            k(f"v_cvt_pk_bf16_f32 v{10+4*i+j}, v{d}, v{d+1}")
        if i == 4:
            k("s_add_u32 s20, s20, 4096")
        k(f"buffer_store_dwordx4 v[{10+4*i}:{13+4*i}], v8, s[12:15], s20 offen offset:{1024*(i%4)}")
    k("s_endpgm")
    k.label("L_k0_notln")
    k(f"""
    s_cmp_ge_u32 s2, 124
    s_cbranch_scc1 L_k0_repack
    s_load_dwordx2 s[8:9], s[0:1], {W_MOD}
    s_load_dwordx2 s[16:17], s[0:1], {C_}
    s_sub_u32 s24, s2, 64
    s_mov_b32 s25, 7680
    """)
    dma_lane_off(k, 5, 1, 3, 4, 128, "s25")
    k(f"""
    s_lshl_b32 s26, s24, 7
    v_add_u32 v5, s26, v5
    s_mul_i32 s27, s3, 614400
    s_mul_i32 s28, s3, 10240
    s_add_u32 s28, s28, {WB}
    v_lshlrev_b32 v6, 2, v0
    s_waitcnt lgkmcnt(0)
    """)
    srd(k, 8, 8, 640 * 7680)
    srd(k, 12, 4, WS_BYTES)
    srd(k, 16, 16, 1280)
    k("buffer_load_dword v7, v6, s[16:19], 0 offen")
    for i in range(10):
        k(f"s_mov_b32 m0, s28")
        k(f"s_add_u32 s28, s28, 1024")
        k(f"buffer_load_dwordx4 v5, s[8:11], s27 offen lds")
        k(f"s_add_u32 s27, s27, 61440")
    k(f"""
    s_and_b32 s29, s3, 1               ; T
    s_lshr_b32 s30, s3, 1              ; K quarter
    """)
    tr_lane_addr(k, 8, 1, 3, 4, 128, Treg="s29")
    k(f"""
    s_mul_i32 s31, s30, 20480
    s_add_u32 s31, s31, {WB}
    v_add_u32 v8, s31, v8
    v_lshrrev_b32 v4, 5, v1
    v_lshlrev_b32 v9, 4, v4
    s_mul_i32 s31, s30, 320
    s_add_u32 s31, s31, {SC}
    v_add_u32 v9, s31, v9              ; token frag address
    s_waitcnt vmcnt(10)
    v_lshlrev_b32 v10, 16, v7
    v_and_b32 v11, 0xffff0000, v7
    v_mul_f32 v12, {f32hex(-LOG2E)}, v10
    v_mul_f32 v13, {f32hex(-LOG2E)}, v11
    v_exp_f32 v12, v12
    v_exp_f32 v13, v13
    s_nop 0
    v_add_f32 v12, 1.0, v12
    v_add_f32 v13, 1.0, v13
    v_rcp_f32 v12, v12
    v_rcp_f32 v13, v13
    s_nop 0
    v_mul_f32 v10, v10, v12
    v_mul_f32 v11, v11, v13
    v_cvt_pk_bf16_f32 v10, v10, v11
    v_cmp_gt_u32 vcc, 320, v0
    s_and_saveexec_b64 s[32:33], vcc
    ds_write_b32 v6, v10 offset:{SC}
    s_mov_b64 exec, s[32:33]
    s_waitcnt vmcnt(0) lgkmcnt(0)
    s_barrier
    """)
    for s in range(10):
        k(f"ds_read_b128 v[{16+8*s}:{19+8*s}], v9 offset:{32*s}")
        k(f"ds_read_b64_tr_b16 v[{20+8*s}:{21+8*s}], v8 offset:{2048*s}")
        k(f"ds_read_b64_tr_b16 v[{22+8*s}:{23+8*s}], v8 offset:{2048*s+512}")
    k("s_waitcnt lgkmcnt(0)")
    for s in range(10):
        c = "0" if s == 0 else "v[100:115]"
        k(f"v_mfma_f32_32x32x16_bf16 v[100:115], v[{20+8*s}:{23+8*s}], v[{16+8*s}:{19+8*s}], {c}")
    k(f"""
    s_lshl_b32 s31, s30, 8
    s_lshl_b32 s34, s29, 7
    s_add_u32 s31, s31, s34
    s_add_u32 s31, s31, {RED}
    v_lshlrev_b32 v10, 6, v4
    v_add_u32 v10, s31, v10
    v_lshrrev_b32 v11, 5, v1           ; T
    v_bfe_u32 v12, v1, 3, 1            ; h
    v_lshl_add_u32 v11, v11, 1, v12
    v_lshlrev_b32 v11, 6, v11
    v_bfe_u32 v12, v1, 4, 1
    v_lshl_add_u32 v11, v12, 5, v11
    v_and_b32 v12, 7, v1
    v_lshl_add_u32 v11, v12, 2, v11
    s_nop 3
    s_mov_b32 exec_lo, 1
    s_mov_b32 exec_hi, 1
    ds_write_b128 v10, v[100:103]
    ds_write_b128 v10, v[104:107] offset:16
    ds_write_b128 v10, v[108:111] offset:32
    ds_write_b128 v10, v[112:115] offset:48
    s_mov_b64 exec, -1
    s_waitcnt lgkmcnt(0)
    s_barrier
    s_cmp_lg_u32 s3, 0
    s_cbranch_scc1 L_k0_end
    ds_read_b32 v12, v11 offset:{RED}
    ds_read_b32 v13, v11 offset:{RED+256}
    ds_read_b32 v14, v11 offset:{RED+512}
    ds_read_b32 v15, v11 offset:{RED+768}
    s_mul_i32 s34, s24, 205
    s_lshr_b32 s34, s34, 11
    s_cmp_eq_u32 s34, 1
    s_cselect_b32 s35, 1.0, 0
    s_cmp_eq_u32 s34, 4
    s_cselect_b32 s35, 1.0, s35
    s_lshl_b32 s36, s24, 8
    v_lshlrev_b32 v16, 2, v1
    s_waitcnt lgkmcnt(0)
    v_add_f32 v12, v12, v13
    v_add_f32 v14, v14, v15
    v_add_f32 v12, v12, v14
    v_cvt_pk_bf16_f32 v12, v12, v12
    v_lshlrev_b32 v12, 16, v12
    v_add_f32 v12, s35, v12
    v_cvt_pk_bf16_f32 v12, v12, v12
    v_lshlrev_b32 v12, 16, v12
    buffer_store_dword v12, v16, s[12:15], s36 offen offset:{MODF}
    s_cmp_eq_u32 s34, 2
    s_cbranch_scc1 L_k0_end
    s_cmp_gt_u32 s34, 2
    s_cbranch_scc1 L_k0_gfr
    s_mul_i32 s37, s34, 10
    s_sub_u32 s37, s24, s37
    s_lshl_b32 s37, s37, 9
    s_cmp_eq_u32 s34, 0
    s_cselect_b32 s38, 32, 0
    s_add_u32 s37, s37, s38
    s_add_u32 s37, s37, {M1T}
    v_lshrrev_b32 v13, 3, v1
    v_lshlrev_b32 v13, 6, v13
    v_and_b32 v14, 7, v1
    v_lshl_add_u32 v13, v14, 2, v13
    buffer_store_dword v12, v13, s[12:15], s37 offen
    s_endpgm
L_k0_gfr:
    ; G fragment rows: which 4 (g2) -> tok 0, which 3 (sb) -> tok 1, which 5 -> ones at tok 2
    s_mul_i32 s37, s34, 10
    s_sub_u32 s37, s24, s37
    s_lshl_b32 s37, s37, 12            ; 4 ksteps * 1024
    s_cmp_eq_u32 s34, 3
    s_cselect_b32 s38, 16, 0
    s_cmp_eq_u32 s34, 5
    s_cselect_b32 s38, 32, s38
    s_cselect_b32 s39, 1, 0
    s_add_u32 s37, s37, s38
    s_add_u32 s37, s37, {GF}
    v_lshrrev_b32 v13, 4, v1
    v_lshlrev_b32 v13, 10, v13
    v_bfe_u32 v14, v1, 3, 1
    v_lshl_add_u32 v13, v14, 9, v13
    v_and_b32 v14, 7, v1
    v_lshl_add_u32 v13, v14, 1, v13
    s_cmp_eq_u32 s39, 1
    s_cbranch_scc0 L_k0_gst
    v_mov_b32 v12, 1.0
L_k0_gst:
    buffer_store_short_d16_hi v12, v13, s[12:15], s37 offen
    s_endpgm
    """)
    k.label("L_k0_repack")
    k(f"""
    s_load_dwordx2 s[8:9], s[0:1], {A_WK}
    s_load_dwordx2 s[16:17], s[0:1], {A_WV}
    s_sub_u32 s24, s2, 124
    s_lshl_b32 s24, s24, 3
    s_add_u32 s24, s24, s3
    s_cmp_ge_u32 s24, 20
    s_cbranch_scc1 L_k0_end
    s_waitcnt lgkmcnt(0)
    s_mov_b32 s25, {WKV}
    s_cmp_ge_u32 s24, 10
    s_cselect_b32 s8, s16, s8
    s_cselect_b32 s9, s17, s9
    s_cselect_b32 s25, {WKV+64}, s25
    s_cselect_b32 s26, 10, 0
    s_sub_u32 s24, s24, s26
    s_lshl_b32 s24, s24, 6
    v_add_u32 v3, s24, v1              ; row
    v_mul_u32_u24 v4, 40, v3
    v_lshlrev_b32 v5, 7, v3
    """)
    srd(k, 8, 8, 25600)
    srd(k, 12, 4, WS_BYTES)
    k("""
    buffer_load_dwordx4 v[8:11], v4, s[8:11], 0 offen
    buffer_load_dwordx4 v[12:15], v4, s[8:11], 0 offen offset:16
    buffer_load_dwordx2 v[16:17], v4, s[8:11], 0 offen offset:32
    s_waitcnt vmcnt(0)
    buffer_store_dwordx4 v[8:11], v5, s[12:15], s25 offen
    buffer_store_dwordx4 v[12:15], v5, s[12:15], s25 offen offset:16
    buffer_store_dwordx2 v[16:17], v5, s[12:15], s25 offen offset:32
    """)
    k.label("L_k0_end")
    k("s_endpgm")
    return k, (127, 512, 86016)


class G:
    pass


def gemm_prologue_ids(k, cfg):
    k(f"""
    s_cmp_ge_u32 s2, {cfg.GRID}
    s_cbranch_scc1 L_{k.name}_end
    {'s_memrealtime s[80:81]' if STAMP else ''}
    s_load_dwordx2 s[4:5], s[0:1], {WS}
    v_and_b32 v1, 63, v0
    v_lshrrev_b32 v2, 6, v0
    s_and_b32 s20, s2, 7
    v_readfirstlane_b32 s3, v2
    s_mul_i32 s20, s20, {cfg.PER}
    s_lshr_b32 s21, s2, 3
    s_add_u32 s20, s20, s21
    """)


def gemm_loader(k, c, mode="lin", pat=5, tag="w"):
    lab = k.name + "_" + tag
    N = c.NW if mode != "tok" else c.MT * c.KS
    base = c.LB + (c.WCH if mode == "tok" else 0)

    def issue_chunk():
        if mode == "lin":
            for i in range(N):
                k(f"s_add_u32 m0, s26, {i*1024}" if i else "s_mov_b32 m0, s26")
                k("s_add_u32 s25, s25, s29")
                k(f"buffer_load_dwordx4 v{pat}, s[8:11], s25 offen lds")
        elif mode == "pat5":
            k("s_add_u32 s25, s25, s35")
            for i in range(N):
                k(f"s_add_u32 m0, s26, {i*1024}" if i else "s_mov_b32 m0, s26")
                k("s_add_u32 s27, s25, s29" if i == 0 else "s_nop 0")
                k(f"buffer_load_dwordx4 v{pat + i//2}, s[8:11], {'s27' if i%2 else 's25'} offen lds")
        else:
            for s in range(c.KS):
                for m in range(c.MT):
                    k(f"s_add_u32 m0, s26, {(m*c.KS+s)*1024}")
                    k(f"s_add_u32 s27, s25, {m*c.KSTEPS*1024 + s*1024}")
                    k(f"buffer_load_dwordx4 v{pat}, s[12:15], s27 offen lds")
            k(f"s_add_u32 s25, s25, {c.KS*1024}")
        k(f"s_add_u32 s26, s26, {c.SLOT}")
        k(f"s_cmp_eq_u32 s26, {base + c.S*c.SLOT}")
        k(f"s_cselect_b32 s26, {base}, s26")

    init = {"lin": "s_sub_u32 s25, 0, s29", "pat5": "s_sub_u32 s25, 0, s35", "tok": "s_mov_b32 s25, 0"}[mode]
    k(f"{init}\ns_mov_b32 s26, {base}\ns_mov_b32 s28, 0")
    stamp(k, 1, 0)
    A = c.AHEAD
    assert c.S >= A + 1 and c.NCH >= A
    k.label(f"L_{lab}_fill")
    issue_chunk()
    k(f"""
    s_add_u32 s28, s28, 1
    s_cmp_lt_u32 s28, {A}
    s_cbranch_scc1 L_{lab}_fill
    """)
    stamp(k, 2, 0)
    if c.NCH > A:
        k.label(f"L_{lab}_loop")
        k(f"s_waitcnt vmcnt({min(63,(A-1)*N)})")
        k("s_barrier")
        issue_chunk()
        k(f"""
        s_add_u32 s28, s28, 1
        s_cmp_lt_u32 s28, {c.NCH}
        s_cbranch_scc1 L_{lab}_loop
        """)
    stamp(k, 3, 0)
    for j in range(c.NCH - A, c.NCH + 1):
        if j < c.NCH:
            k(f"s_waitcnt vmcnt({min(63,(c.NCH-j-1)*N)})")
        k("s_barrier")


def gemm_compute(k, cfg, modulate=False, acc_init=None):
    c = cfg
    lab = k.name
    NT, KS = c.NT, c.KS
    for T in range(NT):
        tr_lane_addr(k, c.vA + T, 1, c.tmp, c.tmp + 1, c.ROWB, T=T)
    k(f"""
    v_lshlrev_b32 v{c.vL16}, 4, v1
    s_mul_i32 s30, s3, {KS*1024}
    s_add_u32 s30, s30, {c.WCH}        ; this wave's token area offset inside a slot
    v_add_u32 v{c.vT}, s30, v{c.vL16}
    """)
    stamp(k, 1, 0)
    if acc_init is not None:
        acc_init()
    else:
        for r in range(NT * 16):
            k(f"v_mov_b32 v{c.ACC+r}, 0")

    def reads(setid):
        out = []
        for s in range(KS):
            tf = c.TF + (setid * KS + s) * 4
            out.append(f"ds_read_b128 v[{tf}:{tf+3}], v{c.vTc} offset:{s*1024}")
            for T in range(NT):
                wf = c.WF + ((setid * KS + s) * NT + T) * 4
                o = s * 16 * c.ROWB
                out.append(f"ds_read_b64_tr_b16 v[{wf}:{wf+1}], v{c.vAc+T} offset:{o}")
                out.append(f"ds_read_b64_tr_b16 v[{wf+2}:{wf+3}], v{c.vAc+T} offset:{o+4*c.ROWB}")
        return out

    def set_addr(sreg):
        for T in range(NT):
            k(f"v_add_u32 v{c.vAc+T}, {sreg}, v{c.vA+T}")
        k(f"v_add_u32 v{c.vTc}, {sreg}, v{c.vT}")

    def table_reads(s):
        out = []
        for q in range(4):
            r = c.TAB + s * 16 + q * 4
            out.append(f"ds_read_b128 v[{r}:{r+3}], v{c.vTab} offset:{s*128+q*16}")
        return out

    def modul(setid, s):
        tf = c.TF + (setid * KS + s) * 4
        t = c.TAB + s * 16
        out = []
        for j in range(4):
            a, b = c.mtmp + 2 * j, c.mtmp + 2 * j + 1
            out.append(f"v_lshlrev_b32 v{a}, 16, v{tf+j}")
            out.append(f"v_and_b32 v{b}, s34, v{tf+j}")
            out.append(f"v_fmac_f32 v{t+8+2*j}, v{a}, v{t+2*j}")
            out.append(f"v_fmac_f32 v{t+8+2*j+1}, v{b}, v{t+2*j+1}")
            out.append(f"v_cvt_pk_bf16_f32 v{tf+j}, v{t+8+2*j}, v{t+8+2*j+1}")
        return out

    k(f"""
    s_mov_b32 s31, {c.LB}
    s_mov_b32 s32, {c.LB + c.SLOT}     ; slot(c+1)
    """)
    set_addr("s31")
    k("s_barrier")
    stamp(k, 2, 0)
    for r in reads(0):
        k(r)
    if modulate:
        for s_ in range(KS):
            for r in table_reads(s_):
                k(r)
        k(f"v_add_u32 v{c.vTab}, {128*KS}, v{c.vTab}")
        k("s_mov_b32 s34, 0xffff0000")
    k("s_mov_b32 s28, 0")
    k.label(f"L_{lab}_loop")
    for half in range(2):
        cur, nxt = half, 1 - half
        k("s_waitcnt lgkmcnt(0)")
        set_addr("s32")
        k(f"""
        s_add_u32 s32, s32, {c.SLOT}
        s_cmp_eq_u32 s32, {c.LB + c.S*c.SLOT}
        s_cselect_b32 s32, {c.LB}, s32
        s_barrier
        """)
        rd = reads(nxt)
        mf = []
        for s in range(KS):
            tf = c.TF + (cur * KS + s) * 4
            for T in range(NT):
                wf = c.WF + ((cur * KS + s) * NT + T) * 4
                a = c.ACC + T * 16
                mf.append((s, f"v_mfma_f32_32x32x16_bf16 v[{a}:{a+15}], v[{wf}:{wf+3}], v[{tf}:{tf+3}], v[{a}:{a+15}]"))
        nslots = max(1, len(mf) - 1)
        per = (len(rd) + nslots - 1) // nslots
        if not modulate:
            for n, (s, m) in enumerate(mf):
                k(m)
                for r in rd[n * per:(n + 1) * per]:
                    k(r)
        else:
            for x in modul(cur, 0):
                k(x)
            tr0 = table_reads(0)
            k(tr0[0])
            k(tr0[1])
            pend = tr0[2:]
            n = 0
            for s in range(KS):
                nm = modul(cur, s + 1) if s + 1 < KS else []
                ms = [m for (ss, m) in mf if ss == s]
                for T, m in enumerate(ms):
                    k(m)
                    fill = rd[n * per:(n + 1) * per] + pend
                    pend = []
                    n += 1
                    chunk = nm[T * len(nm) // NT:(T + 1) * len(nm) // NT]
                    while fill or chunk:
                        if chunk:
                            k(chunk.pop(0))
                            if chunk:
                                k(chunk.pop(0))
                        if fill:
                            k(fill.pop(0))
                if nm:
                    tr = table_reads(s + 1)
                    k(tr[0])
                    k(tr[1])
                    pend = tr[2:]
            assert not pend
            k(f"v_add_u32 v{c.vTab}, {128*KS}, v{c.vTab}")
    k(f"""
    s_add_u32 s28, s28, 2
    s_cmp_lt_u32 s28, {c.NCH}
    s_cbranch_scc1 L_{lab}_loop
    s_waitcnt vmcnt(0) lgkmcnt(0)
    s_nop 7
    s_nop 3
    """)
    stamp(k, 3, 0)
    if STAMP:
        k("s_waitcnt lgkmcnt(0)")


def mkcfg(**kw):
    c = G()
    c.__dict__.update(kw)
    c.ROWB = c.NT * 64
    c.KSTEPS = c.KS * c.NCH
    c.WCH = c.KS * 16 * c.ROWB
    c.TCH = c.MT * c.KS * 1024
    c.SLOT = c.WCH + c.TCH
    c.NW = c.WCH // 1024
    c.ROWSTEP = (1024 // c.ROWB) * c.WSTRIDE
    c.LDS = c.LB + c.S * c.SLOT
    assert c.LDS <= 163840, c.LDS
    assert c.NCH % 2 == 0
    return c


def tok_srd(k, c, base_off, tile0_sreg):
    ks = c.KSTEPS * 1024
    k(f"""
    s_mul_i32 s12, {tile0_sreg}, {ks}
    s_sub_u32 s14, {64*ks}, s12
    s_min_u32 s14, s14, {c.MT*ks}
    s_add_u32 s12, s12, {base_off}
    s_add_u32 s12, s4, s12
    s_addc_u32 s13, s5, 0
    s_mov_b32 s15, 0x20000
    """)


def gen_k1():
    k = Kernel("k1_kernel")
    c = mkcfg(MT=3, NT=2, KS=4, NCH=10, S=7, AHEAD=int(os.environ.get('AHEAD', '4')), LB=5120 + 1024, WSTRIDE=1280, PER=31, GRID=248)
    c.vA, c.vAc, c.vT, c.vTc, c.vL16, c.vTab, c.tmp = 2, 4, 6, 7, 8, 9, 10
    c.mtmp = 12
    c.ACC, c.TF, c.WF, c.TAB = 20, 52, 84, 148
    gemm_prologue_ids(k, c)
    k(f"""
    s_load_dwordx2 s[8:9], s[0:1], {A_WQ}
    s_cmp_ge_u32 s20, 242
    s_cbranch_scc1 L_k1_spare
    s_mul_i32 s21, s20, 745
    s_lshr_b32 s21, s21, 13            ; rb = L/11
    s_mul_i32 s22, s21, 11
    s_sub_u32 s22, s20, s22            ; cb
    s_mul_i32 s33, s21, 3              ; first token tile
    s_add_u32 s23, s33, s3             ; token tile of this wave
    s_waitcnt lgkmcnt(0)
    """)
    srd(k, 16, 4, WS_BYTES)
    k(f"""
    s_cmp_lt_u32 s3, 3
    s_cbranch_scc1 L_k1_compute
    s_cmp_eq_u32 s3, 3
    s_cbranch_scc1 L_k1_wload
    v_lshlrev_b32 v5, 4, v1
    """)
    tok_srd(k, c, XH, "s33")
    gemm_loader(k, c, "tok", 5, "t")
    stamp_flush(k, 1, 4)
    k("s_endpgm")
    k.label("L_k1_wload")
    k(f"""
    v_lshlrev_b32 v2, 4, v1
    s_mov_b32 s35, {M1T}
    """)
    for i in range(5):
        k(f"s_mov_b32 m0, 0\ns_nop 0" if i == 0 else "")
        k(f"buffer_load_dwordx4 v2, s[16:19], s35 offen offset:{1024*i} lds" if i < 4 else
          f"s_mov_b32 m0, 4096\ns_add_u32 s35, s35, 4096\nbuffer_load_dwordx4 v2, s[16:19], s35 offen lds")
    k(f"""
    s_add_u32 s36, s4, {WKV}
    s_addc_u32 s37, s5, 0
    s_cmp_eq_u32 s22, 10
    s_cselect_b32 s8, s36, s8
    s_cselect_b32 s9, s37, s9
    s_mov_b32 s10, {640*1280}
    s_cselect_b32 s10, {640*128}, s10
    s_mov_b32 s11, 0x20000
    s_mov_b32 s24, 1280
    s_cselect_b32 s24, 128, s24
    s_lshl_b32 s34, s22, 7
    s_cmp_eq_u32 s22, 10
    s_cselect_b32 s34, 0, s34
    """)
    dma_lane_off(k, 5, 1, 3, 4, 128, "s24")
    k(f"v_add_u32 v5, s34, v5")
    k("s_lshl_b32 s29, s24, 3")
    gemm_loader(k, c, "lin", 5)
    stamp_flush(k, 1, 4)
    k("s_endpgm")
    k.label("L_k1_compute")
    k(f"""
    v_lshrrev_b32 v{c.vTab}, 5, v1
    v_lshlrev_b32 v{c.vTab}, 6, v{c.vTab}
    """)
    gemm_compute(k, c, modulate=True)
    A = c.ACC
    k(f"""
    s_cmp_ge_u32 s23, 64
    s_cbranch_scc1 L_k1_kernel_end
    v_and_b32 v2, 31, v1               ; tok
    v_lshrrev_b32 v3, 5, v1            ; h
    s_cmp_eq_u32 s22, 10
    s_cbranch_scc1 L_k1_kv
    s_lshl_b32 s34, s23, 5
    v_add_u32 v4, s34, v2
    v_mul_u32_u24 v4, 40, v4           ; token offset
    s_lshl_b32 s34, s22, 4
    v_lshl_add_u32 v5, v3, 1, s34      ; n4 base
    s_mov_b32 s35, {f32hex(20**-0.5*LOG2E)}
    s_mov_b32 s36, {QQ}
    """)
    for T in range(2):
        for qd in range(4):
            a = A + T * 16 + qd * 4
            t = 60 + 8 * ((T * 4 + qd) % 2)
            k(f"""
            v_add_u32 v{t}, {8*T + 4*(qd//2) + qd%2}, v5
            v_mul_u32_u24 v{t+1}, 205, v{t}
            v_lshrrev_b32 v{t+1}, 10, v{t+1}
            v_mul_u32_u24 v{t+1}, 81880, v{t+1}
            v_lshl_add_u32 v{t+1}, v{t}, 3, v{t+1}
            v_add_u32 v{t+1}, v{t+1}, v4
            v_mul_f32 v{a}, s35, v{a}
            v_mul_f32 v{a+1}, s35, v{a+1}
            v_mul_f32 v{a+2}, s35, v{a+2}
            v_mul_f32 v{a+3}, s35, v{a+3}
            v_cvt_pk_bf16_f32 v{t+2}, v{a}, v{a+1}
            v_cvt_pk_bf16_f32 v{t+3}, v{a+2}, v{a+3}
            buffer_store_dwordx2 v[{t+2}:{t+3}], v{t+1}, s[16:19], s36 offen
            """)
    stamp_flush(k, 1, 4)
    k("s_endpgm")
    k.label("L_k1_kv")
    for j in range(6):
        k(f"v_cvt_pk_bf16_f32 v{60+j}, v{A+2*j}, v{A+2*j+1}")
    for j in range(6):
        k(f"v_cvt_pk_bf16_f32 v{68+j}, v{A+16+2*j}, v{A+16+2*j+1}")
    k(f"""
    v_lshlrev_b32 v4, 4, v1
    s_lshr_b32 s38, s23, 2
    s_mul_i32 s38, s38, 10240
    s_add_u32 s38, s38, {KVI}
    s_and_b32 s39, s23, 3
    s_lshl_b32 s34, s39, 10
    s_add_u32 s34, s34, s38
    buffer_store_dwordx4 v[60:63], v4, s[16:19], s34 offen
    v_cmp_gt_u32 vcc, 32, v1
    s_and_b32 s35, s23, 1
    s_lshl_b32 s35, s35, 9
    s_add_u32 s34, s38, s35
    s_and_b32 s35, s23, 2
    s_lshl_b32 s35, s35, 2
    s_add_u32 s34, s34, s35
    s_add_u32 s34, s34, 4096
    v_cndmask_b32 v64, 0, v64, vcc
    v_cndmask_b32 v65, 0, v65, vcc
    v_dot2_f32_bf16 v76, v60, v60, 0
    v_dot2_f32_bf16 v77, v61, v61, 0
    v_dot2_f32_bf16 v78, v62, v62, 0
    v_dot2_f32_bf16 v79, v63, v63, 0
    v_dot2_f32_bf16 v80, v64, v64, 0
    v_dot2_f32_bf16 v81, v65, v65, 0
    ; V lane base: tok = 16m+8a+4h'+i -> m*640 + h'*320 + a*8 + i*2
    v_bfe_u32 v5, v1, 4, 1
    v_mul_u32_u24 v6, 640, v5
    v_bfe_u32 v5, v1, 2, 1
    v_mul_u32_u24 v5, 320, v5
    v_add_u32 v6, v6, v5
    v_bfe_u32 v5, v1, 3, 1
    v_lshl_add_u32 v6, v5, 3, v6
    v_and_b32 v5, 3, v1
    v_lshl_add_u32 v6, v5, 1, v6       ; Vb
    v_lshl_add_u32 v7, v3, 7, v6       ; A variant (+128h)
    v_xor_b32 v5, 1, v3
    v_mul_u32_u24 v5, 192, v5
    v_add_u32 v8, v6, v5               ; B variant (+192(1-h))
    s_mul_i32 s35, s39, 1280
    s_add_u32 s35, s35, s38
    s_add_u32 s35, s35, 5120
    v_add_f32 v76, v76, v77
    v_add_f32 v78, v78, v79
    v_add_f32 v80, v80, v81
    v_add_f32 v76, v76, v78
    v_add_f32 v76, v76, v80
    """)
    for r in range(8):
        op = "buffer_store_short" if r % 2 == 0 else "buffer_store_short_d16_hi"
        if r < 6:
            k(f"{op} v{68+r//2}, v7, s[16:19], s35 offen offset:{(r+6)*16}")
        else:
            k(f"{op} v{68+r//2}, v8, s[16:19], s35 offen offset:{(r-6)*16}")
    half_sum(k, 76, 77)
    k(f"""
    s_mov_b32 exec_hi, 0
    buffer_store_dwordx2 v[64:65], v4, s[16:19], s34 offen
    """)
    for r in range(8, 12):
        op = "buffer_store_short" if r % 2 == 0 else "buffer_store_short_d16_hi"
        k(f"{op} v{68+r//2}, v6, s[16:19], s35 offen offset:{(r-6)*16}")
    k(f"""
    s_mov_b32 exec_hi, -1
    s_nop 1
    v_max_f32_dpp v76, v76, v76 quad_perm:[1,0,3,2] row_mask:0xf bank_mask:0xf
    s_nop 1
    v_max_f32_dpp v76, v76, v76 quad_perm:[2,3,0,1] row_mask:0xf bank_mask:0xf
    s_nop 1
    v_max_f32_dpp v76, v76, v76 row_half_mirror row_mask:0xf bank_mask:0xf
    s_nop 1
    v_max_f32_dpp v76, v76, v76 row_mirror row_mask:0xf bank_mask:0xf
    s_nop 1
    v_readlane_b32 s36, v76, 0
    v_readlane_b32 s37, v76, 16
    s_nop 1
    v_mov_b32 v77, s36
    v_max_f32 v77, s37, v77
    s_lshl_b32 s34, s23, 2
    s_add_u32 s34, s34, {KN}
    v_mov_b32 v5, 0
    s_mov_b32 exec_lo, 1
    s_mov_b32 exec_hi, 0
    buffer_store_dword v77, v5, s[16:19], s34 offen
    s_endpgm
    """)
    k.label("L_k1_spare")
    k(f"""
    s_cmp_lg_u32 s20, 242
    s_cbranch_scc1 L_k1_kernel_end
    s_cmp_lg_u32 s3, 0
    s_cbranch_scc1 L_k1_kernel_end
    s_waitcnt lgkmcnt(0)
    """)
    srd(k, 16, 4, WS_BYTES)
    k(f"""
    v_lshlrev_b32 v2, 2, v1
    s_mov_b32 s34, {MODF + 3*2560}
    s_mov_b32 s35, {MODF + 4*2560}
    """)
    for i in range(10):
        k(f"buffer_load_dword v{10+i}, v2, s[16:19], s34 offen offset:{256*i}")
        k(f"buffer_load_dword v{20+i}, v2, s[16:19], s35 offen offset:{256*i}")
    k("s_waitcnt vmcnt(0)")
    k("v_mov_b32 v30, v20\nv_mul_f32 v31, v20, v20\nv_mov_b32 v32, v10\nv_mul_f32 v33, v10, v10\nv_mul_f32 v34, v10, v20")
    for i in range(1, 10):
        k(f"v_add_f32 v30, v30, v{20+i}\nv_fmac_f32 v31, v{20+i}, v{20+i}\nv_add_f32 v32, v32, v{10+i}\n"
          f"v_fmac_f32 v33, v{10+i}, v{10+i}\nv_fmac_f32 v34, v{10+i}, v{20+i}")
    for mod in ("quad_perm:[1,0,3,2]", "quad_perm:[2,3,0,1]", "row_half_mirror", "row_mirror"):
        for r in range(30, 35):
            k(f"v_add_f32_dpp v{r}, v{r}, v{r} {mod} row_mask:0xf bank_mask:0xf")
    for r in range(30, 35):
        half_sum(k, r, 36)
    for r in range(30, 35):
        k(f"s_nop 0\nv_readlane_b32 s36, v{r}, 16\ns_nop 1\nv_add_f32 v{r}, s36, v{r}\nv_mul_f32 v{r}, {f32hex(1.0/640)}, v{r}")
    k(f"""
    v_mov_b32 v5, 0
    s_mov_b32 s34, {GRAM}
    s_mov_b32 exec_lo, 1
    s_mov_b32 exec_hi, 0
    buffer_store_dwordx2 v[30:31], v5, s[16:19], s34 offen
    buffer_store_dwordx2 v[32:33], v5, s[16:19], s34 offen offset:8
    buffer_store_dword v34, v5, s[16:19], s34 offen offset:16
    """)
    k.label("L_k1_kernel_end")
    k("s_endpgm")
    return k, (c.GRID, 320, c.LDS)


def gen_k2():
    k = Kernel("k2_kernel")
    QA = {"A": 8, "B": 12}
    QB0 = {"A": 16, "B": 20}
    QB1 = {"A": 18, "B": 22}
    NM = {"A": 24, "B": 40}
    O = {"A": 56, "B": 72}
    S = {"A": 88, "B": 104}
    P = {"A": 120, "B": 128}
    KA = [136, 140]
    KB = 144
    V = [148, 156]
    vKa, vV = 164, 165
    T0 = 166
    VMASK = "0x0033ffff"
    k(f"""
    s_cmp_ge_u32 s2, 256
    s_cbranch_scc1 L_k2_end
    {'s_memrealtime s[80:81]' if STAMP else ''}
    s_load_dwordx2 s[4:5], s[0:1], {WS}
    v_and_b32 v1, 63, v0
    v_lshrrev_b32 v2, 6, v0
    s_and_b32 s20, s2, 7               ; xcd
    v_readfirstlane_b32 s3, v2         ; wave
    s_lshr_b32 s21, s2, 3              ; j
    s_and_b32 s22, s21, 7
    s_lshl_b32 s20, s20, 3
    s_add_u32 s20, s20, s22            ; token tile
    s_lshr_b32 s21, s21, 3
    s_and_b32 s22, s3, 3               ; pair
    s_lshr_b32 s23, s3, 2
    s_lshl_b32 s24, s21, 3
    s_lshl_b32 s25, s22, 1
    s_add_u32 s24, s24, s25
    s_add_u32 s25, s24, s23
    s_xor_b32 s26, s23, 1
    s_add_u32 s26, s24, s26            ; head "B"
    s_mul_i32 s27, s20, 1280
    s_add_u32 s27, s27, {QQ}
    s_mul_i32 s28, s25, 81920
    s_add_u32 s28, s28, s27            ; Q_A base
    s_mul_i32 s29, s26, 81920
    s_add_u32 s29, s29, s27            ; Q_B base
    v_and_b32 v2, 31, v1               ; tok / rho
    v_lshrrev_b32 v3, 5, v1            ; h
    v_mul_u32_u24 v4, 40, v2
    v_lshl_add_u32 v5, v3, 4, v4
    v_lshlrev_b32 v6, 2, v1
    v_lshlrev_b32 v7, 4, v1
    s_mov_b32 s30, {KN}
    s_waitcnt lgkmcnt(0)
    """)
    srd(k, 8, 4, WS_BYTES)
    k(f"""
    buffer_load_dwordx4 v[8:11], v5, s[8:11], s28 offen
    buffer_load_dwordx2 v[16:17], v4, s[8:11], s28 offen offset:32
    buffer_load_dwordx4 v[12:15], v5, s[8:11], s29 offen
    buffer_load_dwordx2 v[20:21], v4, s[8:11], s29 offen offset:32
    buffer_load_dword v{T0}, v6, s[8:11], s30 offen
    ; K/V image DMA: chunk c (0..3): region (kh'*4+c)*20480 + (w%4)*5120, kh' = w/4
    s_mul_i32 s31, s23, 81920
    s_mul_i32 s32, s22, 5120
    s_add_u32 s31, s31, s32
    s_add_u32 s32, s31, {KVI}
    """)
    for c in range(4):
        for i in range(5):
            o = c * 20480 + i * 1024
            k(f"s_add_u32 m0, s31, {o}")
            k(f"s_add_u32 s33, s32, {o}")
            k(f"buffer_load_dwordx4 v7, s[8:11], s33 offen lds")
    stamp(k, 1, 2)
    k(f"""
    s_mul_i32 s34, s23, 81920
    v_add_u32 v{vKa}, s34, v7
    ; V slot: hh=(rho>>2)&1, r=4*(rho>>3)+(rho&3), d=10hh+r, slot=(d+6)%20
    v_bfe_u32 v{T0+1}, v2, 2, 1
    v_mul_u32_u24 v{T0+1}, 10, v{T0+1}
    v_lshrrev_b32 v{T0+2}, 3, v2
    v_lshl_add_u32 v{T0+1}, v{T0+2}, 2, v{T0+1}
    v_and_b32 v{T0+2}, 3, v2
    v_add3_u32 v{T0+1}, v{T0+1}, v{T0+2}, 6
    v_subrev_u32 v{T0+2}, 20, v{T0+1}
    v_min_u32 v{T0+1}, v{T0+1}, v{T0+2}
    v_mul_u32_u24 v{T0+2}, 20, v3
    v_add_u32 v{T0+1}, v{T0+1}, v{T0+2}
    v_lshlrev_b32 v{T0+1}, 4, v{T0+1}
    s_add_u32 s34, s34, 5120
    v_add_u32 v{vV}, s34, v{T0+1}
    v_and_b32 v{T0+1}, 27, v2
    v_cmp_eq_u32 vcc, 18, v{T0+1}
    v_mov_b32 v{T0+2}, 0x3f803f80
    s_nop 0
    v_cndmask_b32 v{V[0]}, 0, v{T0+2}, vcc
    """)
    for r in range(V[0] + 1, V[0] + 16):
        k(f"v_mov_b32 v{r}, v{V[0]}")
    for r in list(range(O["A"], O["A"] + 32)) + list(range(P["B"], P["B"] + 8)):
        k(f"v_mov_b32 v{r}, 0")
    k(f"""
    v_cmp_gt_u32 vcc, 32, v1
    s_nop 0
    s_waitcnt vmcnt(20)
    v_cndmask_b32 v18, v16, 0, vcc
    v_cndmask_b32 v19, v17, 0, vcc
    v_cndmask_b32 v16, 0, v16, vcc
    v_cndmask_b32 v17, 0, v17, vcc
    v_cndmask_b32 v22, v20, 0, vcc
    v_cndmask_b32 v23, v21, 0, vcc
    v_cndmask_b32 v20, 0, v20, vcc
    v_cndmask_b32 v21, 0, v21, vcc
    v_max_f32_dpp v{T0}, v{T0}, v{T0} quad_perm:[1,0,3,2] row_mask:0xf bank_mask:0xf
    """)
    for X, t in (("A", T0 + 1), ("B", T0 + 4)):
        q, b = QA[X], QB0[X]
        k(f"""
        v_dot2_f32_bf16 v{t}, v{q}, v{q}, 0
        v_dot2_f32_bf16 v{t+1}, v{q+1}, v{q+1}, 0
        v_dot2_f32_bf16 v{t+2}, v{b}, v{b}, 0
        s_nop 0
        v_dot2_f32_bf16 v{t}, v{q+2}, v{q+2}, v{t}
        v_dot2_f32_bf16 v{t+1}, v{q+3}, v{q+3}, v{t+1}
        v_dot2_f32_bf16 v{t+2}, v{b+1}, v{b+1}, v{t+2}
        """)
        if X == "A":
            k(f"v_max_f32_dpp v{T0}, v{T0}, v{T0} quad_perm:[2,3,0,1] row_mask:0xf bank_mask:0xf")
        else:
            k(f"v_max_f32_dpp v{T0}, v{T0}, v{T0} row_half_mirror row_mask:0xf bank_mask:0xf")
    k(f"""
    s_nop 1
    v_max_f32_dpp v{T0}, v{T0}, v{T0} row_mirror row_mask:0xf bank_mask:0xf
    v_add_f32 v{T0+1}, v{T0+1}, v{T0+2}
    v_add_f32 v{T0+4}, v{T0+4}, v{T0+5}
    v_add_f32 v{T0+1}, v{T0+1}, v{T0+3}
    v_add_f32 v{T0+4}, v{T0+4}, v{T0+6}
    v_readlane_b32 s36, v{T0}, 0
    v_readlane_b32 s37, v{T0}, 16
    v_readlane_b32 s38, v{T0}, 32
    v_readlane_b32 s39, v{T0}, 48
    """)
    half_sum(k, T0 + 1, T0 + 2)
    half_sum(k, T0 + 4, T0 + 5)
    k(f"""
    v_mov_b32 v{T0}, s36
    v_max_f32 v{T0}, s37, v{T0}
    v_max_f32 v{T0}, s38, v{T0}
    v_max_f32 v{T0}, s39, v{T0}
    v_mul_f32 v{T0+1}, v{T0+1}, v{T0}
    v_mul_f32 v{T0+4}, v{T0+4}, v{T0}
    v_sqrt_f32 v{T0+1}, v{T0+1}
    v_sqrt_f32 v{T0+4}, v{T0+4}
    s_nop 0
    v_mul_f32 v{NM['A']}, {f32hex(-1.00390625)}, v{T0+1}
    v_mul_f32 v{NM['B']}, {f32hex(-1.00390625)}, v{T0+4}
    """)
    for r in range(1, 16):
        k(f"v_mov_b32 v{NM['A']+r}, v{NM['A']}")
        k(f"v_mov_b32 v{NM['B']+r}, v{NM['B']}")
    stamp(k, 2, 2)

    def qk(X, t):
        ka = KA[t % 2]
        tb = t % 4
        kb = KB + 2 * (tb // 2)
        qb = (QB0 if tb % 2 == 0 else QB1)[X]
        s_, n = S[X], NM[X]
        return (f"v_mfma_f32_32x32x16_bf16 v[{s_}:{s_+15}], v[{ka}:{ka+3}], v[{QA[X]}:{QA[X]+3}], v[{n}:{n+15}]",
                f"v_mfma_f32_32x32x8_bf16 v[{s_}:{s_+15}], v[{kb}:{kb+1}], v[{qb}:{qb+1}], v[{s_}:{s_+15}]")

    def pv(X, t):
        vv = V[t % 2]
        o, p = O[X], P[X]
        return (f"v_mfma_f32_32x32x16_bf16 v[{o}:{o+15}], v[{vv}:{vv+3}], v[{p}:{p+3}], v[{o}:{o+15}]",
                f"v_mfma_f32_32x32x16_bf16 v[{o}:{o+15}], v[{vv+4}:{vv+7}], v[{p+4}:{p+7}], v[{o}:{o+15}]")

    def rd_ka(t):
        off = (t // 4) * 10240 + (t % 4) * 1024
        return f"ds_read_b128 v[{KA[t%2]}:{KA[t%2]+3}], v{vKa} offset:{off}"

    def rd_kb(g, pair):
        return f"ds_read_b64 v[{KB+2*pair}:{KB+2*pair+1}], v{vKa} offset:{g*10240 + 4096 + 8*pair}"

    def rd_v(t):
        vv = V[t % 2]
        off = (t % 4) * 1280
        return [f"s_mov_b64 exec, s[40:41]",
                f"ds_read_b128 v[{vv}:{vv+3}], v{vV} offset:{off}",
                f"ds_read_b128 v[{vv+4}:{vv+7}], v{vV} offset:{off+640}",
                f"s_mov_b64 exec, -1"]

    def phase(X, mf, extra, first=None):
        s_, p = S[X], P[X]
        ex = []
        for j in range(8):
            ex.append(f"v_exp_f32 v{s_+2*j}, v{s_+2*j}")
            ex.append(f"v_exp_f32 v{s_+2*j+1}, v{s_+2*j+1}")
            if j > 0:
                ex.append(f"v_cvt_pk_bf16_f32 v{p+j-1}, v{s_+2*j-2}, v{s_+2*j-1}")
        last = f"v_cvt_pk_bf16_f32 v{p+7}, v{s_+14}, v{s_+15}"
        pos = {0: mf[0], 6: mf[1], 11: mf[2], 23: mf[3]}
        if first:
            k(first)
        for i, e in enumerate(ex):
            if i in pos:
                k(pos[i])
            if i == 2:
                for x in extra:
                    k(x)
            k(e)
        k(pos[23])
        k(last)

    k(f"""
    s_mov_b32 s40, {VMASK}
    s_mov_b32 s41, {VMASK}
    s_waitcnt vmcnt(15)
    s_barrier
    """)
    stamp(k, 3, 2)
    if STAMP:
        k("s_memtime s[92:93]")
    k(rd_ka(0))
    k(rd_kb(0, 0))
    k("s_waitcnt lgkmcnt(0)")
    a, b = qk("A", 0)
    k(a)
    k(b)
    k("s_mov_b32 s42, 0\ns_nop 7\ns_nop 3")
    k.label("L_k2_loop")
    k(f"""
    s_cmp_lg_u32 s42, 1
    s_cbranch_scc1 L_k2_nosync
    s_waitcnt vmcnt(0)
    s_barrier
    """)
    k.label("L_k2_nosync")
    for t in range(4):
        qa, qb_ = qk("B", t)
        p0, p1 = pv("B", t - 1)
        extra = [rd_ka(t + 1)] + rd_v(t)
        if t == 0:
            extra.append(rd_kb(0, 1))
        if t == 2:
            extra.append(rd_kb(1, 0))
        phase("A", [qa, p0, qb_, p1], extra)
        qa, qb_ = qk("A", t + 1)
        p0, p1 = pv("A", t)
        extra = []
        if t == 3:
            extra = [f"v_add_u32 v{vKa}, 10240, v{vKa}", f"v_add_u32 v{vV}, 10240, v{vV}"]
        phase("B", [qa, p0, qb_, p1], extra, first="s_waitcnt lgkmcnt(0)")
    k(f"""
    s_add_u32 s42, s42, 1
    s_cmp_lt_u32 s42, 8
    s_cbranch_scc1 L_k2_loop
    """)
    p0, p1 = pv("B", 3)
    k("s_nop 0")
    k(p0)
    k(p1)
    stamp(k, 4, 2)
    if STAMP:
        k("s_memtime s[94:95]\ns_waitcnt lgkmcnt(0)\ns_sub_u32 s90, s94, s92")
    k(f"""
    s_mul_i32 s34, s3, 3072
    v_add_u32 v{T0}, s34, v7
    s_xor_b32 s35, s3, 4
    s_mul_i32 s35, s35, 3072
    v_add_u32 v{T0+1}, s35, v7
    s_barrier
    s_nop 7
    ds_write_b128 v{T0}, v[{O['B']}:{O['B']+3}]
    ds_write_b128 v{T0}, v[{O['B']+4}:{O['B']+7}] offset:1024
    ds_write_b128 v{T0}, v[{O['B']+8}:{O['B']+11}] offset:2048
    ; output address: head A = s25 ; delta = 5*(hd%4) + i ; kstep = 5*(hd/4) + delta/4
    s_lshr_b32 s36, s25, 2
    s_mul_i32 s36, s36, 5
    s_mul_i32 s37, s20, 40
    s_add_u32 s36, s36, s37
    s_lshl_b32 s36, s36, 10
    s_add_u32 s36, s36, {OF}
    s_and_b32 s37, s25, 3
    s_mul_i32 s37, s37, 5
    """)
    for i in range(5):
        k(f"""
        s_add_u32 s38, s37, {i}
        s_lshr_b32 s39, s38, 2
        s_lshl_b32 s39, s39, 10
        s_and_b32 s38, s38, 3
        s_lshl_b32 s38, s38, 2
        s_add_u32 s38, s38, s39
        s_add_u32 s{44+i}, s38, s36
        """)
    oa = O["A"]
    k(f"""
    s_waitcnt lgkmcnt(0)
    s_barrier
    ds_read_b128 v[{S['A']}:{S['A']+3}], v{T0+1}
    ds_read_b128 v[{S['A']+4}:{S['A']+7}], v{T0+1} offset:1024
    ds_read_b128 v[{S['A']+8}:{S['A']+11}], v{T0+1} offset:2048
    s_mov_b32 s43, {f32hex(2.0**-64)}
    s_waitcnt lgkmcnt(0)
    """)
    for r in range(11):
        k(f"v_add_f32 v{oa+r}, v{oa+r}, v{S['A']+r}")
    k(f"""
    v_cmp_nle_f32 vcc, s43, v{oa+10}
    s_nop 4
    s_cbranch_vccnz L_k2_fallback
    """)
    k.label("L_k2_final")
    k(f"v_rcp_f32 v{T0+2}, v{oa+10}\ns_nop 0")
    for r in range(10):
        k(f"v_mul_f32 v{oa+r}, v{oa+r}, v{T0+2}")
    for i in range(5):
        k(f"v_cvt_pk_bf16_f32 v{P['A']+i}, v{oa+2*i}, v{oa+2*i+1}")
        k(f"buffer_store_dword v{P['A']+i}, v7, s[8:11], s{44+i} offen")
    stamp_flush(k, 2, 6)
    k("s_endpgm")
    k.label("L_k2_fallback")
    sa, na, pa = S["A"], NM["A"], P["A"]
    MX = T0 + 3
    k(f"""
    v_mov_b32 v{MX}, 0xff800000
    s_mul_i32 s34, s23, 81920
    s_add_u32 s34, s34, {8*10240 + 5120}
    v_subrev_u32 v{vV}, s34, v{vV}
    s_mov_b32 s50, 0                   ; pass
    """)
    for r in range(16):
        k(f"v_mov_b32 v{na+r}, 0")
    k.label("L_k2_fb_pass")
    for r in range(16):
        k(f"v_mov_b32 v{oa+r}, 0")
    k(f"s_mov_b32 s51, {KVI}\ns_mov_b32 s52, 0")
    k.label("L_k2_fb_loop")
    k(f"""
    buffer_load_dwordx4 v[{KB}:{KB+3}], v7, s[8:11], s51 offen offset:4095
    """.replace("offset:4095", "offset:0").replace("s51 offen", "s53 offen").replace("buffer_load", "s_add_u32 s53, s51, 4096\n    buffer_load", 1))
    for t in range(4):
        k(f"""
        buffer_load_dwordx4 v[{KA[0]}:{KA[0]+3}], v7, s[8:11], s51 offen offset:{1024*t}
        s_add_u32 s53, s51, {5120 + 1280*t}
        s_mov_b64 exec, s[40:41]
        buffer_load_dwordx4 v[{V[0]}:{V[0]+3}], v{vV}, s[8:11], s53 offen
        buffer_load_dwordx4 v[{V[0]+4}:{V[0]+7}], v{vV}, s[8:11], s53 offen offset:640
        s_mov_b64 exec, -1
        s_waitcnt vmcnt(0)
        """)
        kb = KB + 2 * (t // 2)
        qb = (QB0 if t % 2 == 0 else QB1)["A"]
        k(f"""
        v_mfma_f32_32x32x16_bf16 v[{sa}:{sa+15}], v[{KA[0]}:{KA[0]+3}], v[{QA['A']}:{QA['A']+3}], v[{na}:{na+15}]
        v_mfma_f32_32x32x8_bf16 v[{sa}:{sa+15}], v[{kb}:{kb+1}], v[{qb}:{qb+1}], v[{sa}:{sa+15}]
        s_nop 7
        s_nop 3
        """)
        for r in range(0, 16, 2):
            k(f"v_max3_f32 v{MX}, v{sa+r}, v{sa+r+1}, v{MX}")
        for r in range(16):
            k(f"v_exp_f32 v{sa+r}, v{sa+r}")
        k("s_nop 0")
        for j in range(8):
            k(f"v_cvt_pk_bf16_f32 v{pa+j}, v{sa+2*j}, v{sa+2*j+1}")
        k(f"""
        s_nop 1
        v_mfma_f32_32x32x16_bf16 v[{oa}:{oa+15}], v[{V[0]}:{V[0]+3}], v[{pa}:{pa+3}], v[{oa}:{oa+15}]
        v_mfma_f32_32x32x16_bf16 v[{oa}:{oa+15}], v[{V[0]+4}:{V[0]+7}], v[{pa+4}:{pa+7}], v[{oa}:{oa+15}]
        """)
    k(f"""
    s_add_u32 s51, s51, 10240
    s_add_u32 s52, s52, 1
    s_cmp_lt_u32 s52, 16
    s_cbranch_scc1 L_k2_fb_loop
    s_nop 7
    s_nop 3
    s_cmp_eq_u32 s50, 1
    s_cbranch_scc1 L_k2_final
    v_mov_b32 v{MX+1}, v{MX}
    s_nop 1
    v_permlane32_swap_b32 v{MX}, v{MX+1}
    v_max_f32 v{MX}, v{MX}, v{MX+1}
    v_sub_f32 v{na}, 0, v{MX}
    """)
    for r in range(1, 16):
        k(f"v_mov_b32 v{na+r}, v{na}")
    k("s_mov_b32 s50, 1\ns_branch L_k2_fb_pass")
    k.label("L_k2_end")
    k("s_endpgm")
    return k, (256, 512, 163840)


def gen_k3():
    k = Kernel("k3_kernel")
    c = mkcfg(MT=3, NT=2, KS=5, NCH=8, S=6, AHEAD=3, LB=1024, WSTRIDE=1280, PER=28, GRID=256)
    c.vA, c.vAc, c.vT, c.vTc, c.vL16, c.tmp = 2, 4, 6, 7, 8, 10
    c.ACC, c.TF, c.WF = 20, 52, 92
    XR = 172
    k(f"""
    s_cmp_ge_u32 s2, {c.GRID}
    s_cbranch_scc1 L_k3_kernel_end
    {'s_memrealtime s[80:81]' if STAMP else ''}
    s_load_dwordx2 s[4:5], s[0:1], {WS}
    s_load_dwordx2 s[8:9], s[0:1], {A_WO}
    s_load_dwordx2 s[36:37], s[0:1], {B_W1}
    s_load_dwordx2 s[40:41], s[0:1], {A_X}
    s_load_dwordx2 s[44:45], s[0:1], {B_B1}
    v_and_b32 v1, 63, v0
    v_lshrrev_b32 v2, 6, v0
    s_and_b32 s20, s2, 7
    v_readfirstlane_b32 s3, v2
    s_lshr_b32 s21, s2, 3              ; j
    s_mov_b32 s48, 0
    s_cmp_lt_u32 s21, 28
    s_cbranch_scc1 L_k3_main
    s_sub_u32 s21, s21, 28
    s_lshl_b32 s21, s21, 3
    s_add_u32 s22, s21, s20
    s_cmp_ge_u32 s22, 27
    s_cbranch_scc1 L_k3_kernel_end
    s_mov_b32 s48, 1
    s_mov_b32 s33, 0
    s_mov_b32 s23, s3
    s_branch L_k3_ids
    """)
    k.label("L_k3_main")
    k(f"""
    s_mul_i32 s20, s20, 28
    s_add_u32 s20, s20, s21
    s_cmp_ge_u32 s20, 220
    s_cbranch_scc1 L_k3_kernel_end
    s_mul_i32 s21, s20, 205
    s_lshr_b32 s21, s21, 11            ; rb = L/10
    s_mul_i32 s22, s21, 10
    s_sub_u32 s22, s20, s22            ; cb
    s_mul_i32 s33, s21, 3
    s_add_u32 s23, s33, s3
    """)
    k.label("L_k3_ids")
    k("s_waitcnt lgkmcnt(0)")
    srd(k, 16, 4, WS_BYTES)
    k(f"""
    s_cmp_lt_u32 s3, 3
    s_cbranch_scc1 L_k3_compute
    s_cmp_eq_u32 s3, 3
    s_cbranch_scc1 L_k3_wload
    v_lshlrev_b32 v5, 4, v1
    """)
    tok_srd(k, c, OF, "s33")
    k(f"""
    s_cmp_eq_u32 s48, 0
    s_cbranch_scc1 L_k3_tl
    s_add_u32 s12, s4, {GF}
    s_addc_u32 s13, s5, 0
    s_mov_b32 s14, 40960
    """)
    k.label("L_k3_tl")
    gemm_loader(k, c, "tok", 5, "t")
    stamp_flush(k, 3, 4)
    k("s_endpgm")
    k.label("L_k3_wload")
    k(f"""
    v_lshlrev_b32 v2, 2, v1
    s_lshl_b32 s34, s22, 8
    s_min_u32 s34, s34, 2304
    s_add_u32 s35, s34, {MODF + 2*2560}
    s_mov_b32 m0, 0
    s_nop 0
    buffer_load_dword v2, s[16:19], s35 offen lds
    s_add_u32 s35, s34, {MODF + 4*2560}
    s_mov_b32 m0, 256
    s_nop 0
    buffer_load_dword v2, s[16:19], s35 offen lds
    s_add_u32 s35, s34, {MODF + 3*2560}
    s_mov_b32 m0, 512
    s_nop 0
    buffer_load_dword v2, s[16:19], s35 offen lds
    s_cmp_eq_u32 s48, 1
    s_cselect_b32 s8, s36, s8
    s_cselect_b32 s9, s37, s9
    s_mov_b32 s10, {640*1280}
    s_cselect_b32 s10, {640*3456}, s10
    s_mov_b32 s11, 0x20000
    s_mov_b32 s24, 1280
    s_cselect_b32 s24, 3456, s24
    s_cselect_b32 s29, 8, 10
    s_mul_i32 s29, s29, s24            ; h step
    s_mul_i32 s35, s24, 80
    s_lshl_b32 s34, s22, 7
    """)
    k(f"""
    v_lshrrev_b32 v3, 3, v1            ; j
    v_bfe_u32 v4, v1, 4, 1
    v_lshlrev_b32 v4, 2, v4
    v_and_b32 v2, 7, v1
    v_xor_b32 v2, v2, v4
    v_lshl_add_u32 v2, v2, 4, s34
    """)
    for sp in range(5):
        k(f"""
        v_add_u32 v4, {8*sp}, v3
        v_mul_u32_u24 v12, 205, v4
        v_lshrrev_b32 v12, 11, v12
        v_mul_u32_u24 v12, 10, v12
        v_mov_b32 v13, {8*sp}
        """)
        k(f"""
        v_cmp_eq_u32 vcc, 1, s48
        s_nop 1
        v_cndmask_b32 v12, v12, v13, vcc
        v_add_u32 v4, v4, v12
        v_mad_u32_u24 v{5+sp}, v4, s24, v2
        """.replace("v_cmp_eq_u32 vcc, 1, s48", "v_mov_b32 v14, s48\n        v_cmp_eq_u32 vcc, 1, v14"))
    gemm_loader(k, c, "pat5", 5, "w")
    stamp_flush(k, 3, 4)
    k("s_endpgm")
    k.label("L_k3_compute")
    srd(k, 40, 40, 2621440)
    k(f"""
    v_and_b32 v12, 31, v1
    v_lshrrev_b32 v13, 5, v1
    v_mul_u32_u24 v14, 1280, v12
    v_lshl_add_u32 v14, v13, 4, v14
    s_mul_i32 s34, s23, 40960
    s_lshl_b32 s35, s22, 7
    s_add_u32 s34, s34, s35
    s_min_u32 s34, s34, {2621440}
    """)
    for T in range(2):
        for u in range(2):
            r = XR + (T * 2 + u) * 4
            k(f"buffer_load_dwordx4 v[{r}:{r+3}], v14, s[40:43], s34 offen offset:{64*T+32*u}")
    gemm_compute(k, c)
    A = c.ACC
    k(f"""
    s_cmp_ge_u32 s23, 64
    s_cbranch_scc1 L_k3_kernel_end
    s_cmp_eq_u32 s48, 1
    s_cbranch_scc1 L_k3_side
    v_lshlrev_b32 v2, 5, v13
    s_mul_i32 s34, s23, 40
    s_lshl_b32 s35, s22, 2
    s_add_u32 s34, s34, s35
    s_lshl_b32 s34, s34, 10
    s_add_u32 s35, s34, {ZF}
    s_add_u32 s34, s34, {X1F}
    s_mov_b32 s36, 0xffff0000
    """)
    TB = 52
    SUM = 100
    TM = 112
    for r in range(12):
        k(f"v_mov_b32 v{SUM+r}, 0")

    def tab(i):
        T, u = i // 2, i % 2
        b = TB + (i % 2) * 24
        o = (32 * T + 16 * u) * 4
        for vec in range(3):
            k(f"ds_read_b128 v[{b+8*vec}:{b+8*vec+3}], v2 offset:{256*vec + o}")
            k(f"ds_read_b128 v[{b+8*vec+4}:{b+8*vec+7}], v2 offset:{256*vec + o + 16}")
    tab(0)
    for i in range(4):
        T, u = i // 2, i % 2
        b = TB + (i % 2) * 24
        if i < 3:
            tab(i + 1)
            k("s_waitcnt lgkmcnt(6)")
        else:
            k("s_waitcnt lgkmcnt(0)")
        xr = XR + i * 4
        a = A + T * 16 + u * 8
        o1, o2 = TM + 8 + (i % 2) * 8, TM + 12 + (i % 2) * 8
        for j in range(4):
            x0 = TM + (j % 2) * 4
            z0 = x0 + 2
            ga, g2, sb = b + 2 * j, b + 8 + 2 * j, b + 16 + 2 * j
            k(f"""
            v_lshlrev_b32 v{x0}, 16, v{xr+j}
            v_and_b32 v{x0+1}, s36, v{xr+j}
            v_pk_fma_f32 v[{x0}:{x0+1}], v[{ga}:{ga+1}], v[{a+2*j}:{a+2*j+1}], v[{x0}:{x0+1}]
            v_pk_mul_f32 v[{z0}:{z0+1}], v[{x0}:{x0+1}], v[{g2}:{g2+1}]
            v_pk_add_f32 v[{SUM}:{SUM+1}], v[{SUM}:{SUM+1}], v[{x0}:{x0+1}]
            v_pk_fma_f32 v[{SUM+2}:{SUM+3}], v[{x0}:{x0+1}], v[{x0}:{x0+1}], v[{SUM+2}:{SUM+3}]
            v_pk_add_f32 v[{SUM+4}:{SUM+5}], v[{SUM+4}:{SUM+5}], v[{z0}:{z0+1}]
            v_pk_fma_f32 v[{SUM+6}:{SUM+7}], v[{z0}:{z0+1}], v[{z0}:{z0+1}], v[{SUM+6}:{SUM+7}]
            v_pk_fma_f32 v[{SUM+8}:{SUM+9}], v[{z0}:{z0+1}], v[{g2}:{g2+1}], v[{SUM+8}:{SUM+9}]
            v_pk_fma_f32 v[{SUM+10}:{SUM+11}], v[{z0}:{z0+1}], v[{sb}:{sb+1}], v[{SUM+10}:{SUM+11}]
            v_cvt_pk_bf16_f32 v{o1+j}, v{x0}, v{x0+1}
            v_cvt_pk_bf16_f32 v{o2+j}, v{z0}, v{z0+1}
            """)
        k(f"buffer_store_dwordx4 v[{o1}:{o1+3}], v{c.vL16}, s[16:19], s34 offen offset:{1024*i}")
        k(f"buffer_store_dwordx4 v[{o2}:{o2+3}], v{c.vL16}, s[16:19], s35 offen offset:{1024*i}")
    for q in range(6):
        k(f"v_add_f32 v{60+q}, v{SUM+2*q}, v{SUM+2*q+1}")
    for q in range(6):
        k(f"v_mov_b32 v{68+q}, v{60+q}")
    k("s_nop 0")
    for q in range(6):
        k(f"v_permlane32_swap_b32 v{60+q}, v{68+q}")
    for q in range(6):
        k(f"v_add_f32 v{60+q}, v{60+q}, v{68+q}")
    k(f"""
    s_lshl_b32 s34, s23, 5
    v_add_u32 v2, s34, v12             ; row
    v_mul_u32_u24 v2, 320, v2
    s_lshl_b32 s34, s22, 5
    s_add_u32 s34, s34, {ST}
    s_mov_b32 exec_hi, 0
    buffer_store_dwordx4 v[60:63], v2, s[16:19], s34 offen
    buffer_store_dwordx2 v[64:65], v2, s[16:19], s34 offen offset:16
    """)
    stamp_flush(k, 3, 4)
    k("s_endpgm")
    k.label("L_k3_side")
    k(f"""
    s_cmp_lg_u32 s3, 0
    s_cbranch_scc1 L_k3_kernel_end
    """)
    srd(k, 44, 44, 3456)
    k(f"""
    v_lshlrev_b32 v2, 1, v1
    s_lshl_b32 s34, s22, 7
    buffer_load_ushort v60, v2, s[44:47], s34 offen      ; b1[n] bits
    ; write acc of lanes tok<3 to LDS [tok][64] f32 at offset 0
    v_lshlrev_b32 v2, 8, v12
    v_lshl_add_u32 v2, v13, 5, v2
    s_mov_b32 exec_lo, 7
    s_mov_b32 exec_hi, 7
    """)
    for T in range(2):
        for u in range(2):
            a = A + T * 16 + u * 8
            o = (32 * T + 16 * u) * 4
            k(f"ds_write_b128 v2, v[{a}:{a+3}] offset:{o}")
            k(f"ds_write_b128 v2, v[{a+4}:{a+7}] offset:{o+16}")
    k(f"""
    s_mov_b64 exec, -1
    v_lshlrev_b32 v2, 2, v1
    s_waitcnt lgkmcnt(0)
    ds_read_b32 v61, v2
    ds_read_b32 v62, v2 offset:256
    ds_read_b32 v63, v2 offset:512
    s_mov_b32 s36, 0xffff0000
    s_waitcnt lgkmcnt(0) vmcnt(0)
    """)
    for i in range(3):
        u_, hi, lo = 61 + i, 64 + i, 67 + i
        k(f"""
        v_cvt_pk_bf16_f32 v{hi}, v{u_}, v{u_}
        v_and_b32 v70, s36, v{hi}
        v_sub_f32 v70, v{u_}, v70
        v_cvt_pk_bf16_f32 v{lo}, v70, v70
        """)
    k(f"""
    s_mov_b32 s37, 0xffff
    v_mov_b32 v72, v64
    v_bfi_b32 v73, s37, v67, v65
    v_bfi_b32 v74, s37, v65, v68
    v_mov_b32 v75, v66
    v_and_b32 v76, s37, v69
    v_lshl_or_b32 v76, v60, 16, v76
    v_mov_b32 v77, v60
    v_mov_b32 v78, 0
    v_mov_b32 v79, 0
    ; dest: tile = 2*cb + n/32 ; rho = swap bits 2,3 of n%32
    v_lshrrev_b32 v2, 5, v1
    v_lshlrev_b32 v2, 10, v2
    v_and_b32 v3, 19, v1
    v_bfe_u32 v4, v1, 2, 1
    v_lshl_add_u32 v3, v4, 3, v3
    v_bfe_u32 v4, v1, 3, 1
    v_lshl_add_u32 v3, v4, 2, v3
    v_lshl_add_u32 v2, v3, 4, v2
    s_lshl_b32 s34, s22, 11
    s_add_u32 s34, s34, {UF}
    buffer_store_dwordx4 v[72:75], v2, s[16:19], s34 offen
    buffer_store_dwordx4 v[76:79], v2, s[16:19], s34 offen offset:512
    """)
    k.label("L_k3_kernel_end")
    k("s_endpgm")
    return k, (c.GRID, 320, c.LDS)


def gen_k4():
    k = Kernel("k4_kernel")
    c = mkcfg(MT=4, NT=4, KS=2, NCH=20, S=9, AHEAD=4, LB=0, WSTRIDE=3456, PER=28, GRID=224)
    c.vA, c.vAc, c.vT, c.vTc, c.vL16, c.tmp = 2, 6, 10, 11, 12, 14
    c.ACC, c.TF, c.WF = 20, 84, 100
    SR = 164
    UR = 196
    EX = 212
    AR = 216
    gemm_prologue_ids(k, c)
    k(f"""
    s_load_dwordx2 s[8:9], s[0:1], {B_W1}
    s_mul_i32 s21, s20, 4682
    s_lshr_b32 s21, s21, 16            ; rb = L/14
    s_mul_i32 s22, s21, 14
    s_sub_u32 s22, s20, s22            ; cb
    s_lshl_b32 s33, s21, 2
    s_add_u32 s23, s33, s3
    s_waitcnt lgkmcnt(0)
    """)
    srd(k, 16, 4, WS_BYTES)
    k(f"""
    s_cmp_lt_u32 s3, 4
    s_cbranch_scc1 L_k4_compute
    s_cmp_eq_u32 s3, 4
    s_cbranch_scc1 L_k4_wload
    v_lshlrev_b32 v5, 4, v1
    """)
    tok_srd(k, c, ZF, "s33")
    gemm_loader(k, c, "tok", 5, "t")
    stamp_flush(k, 4, 4)
    k("s_endpgm")
    k.label("L_k4_wload")
    srd(k, 8, 8, 640 * 3456)
    k("s_mov_b32 s24, 3456")
    dma_lane_off(k, 5, 1, 3, 4, 256, "s24")
    k(f"""
    s_lshl_b32 s34, s22, 8
    v_add_u32 v5, s34, v5
    s_mov_b32 s29, {4*3456}
    """)
    gemm_loader(k, c, "lin", 5, "w")
    stamp_flush(k, 4, 4)
    k("s_endpgm")
    k.label("L_k4_compute")
    k(f"""
    s_add_u32 s36, s4, {GRAM}
    s_addc_u32 s37, s5, 0
    s_load_dwordx4 s[40:43], s[36:37], 0
    s_load_dword s44, s[36:37], 16
    v_and_b32 v16, 31, v1
    v_lshrrev_b32 v17, 5, v1
    s_lshl_b32 s34, s23, 5
    v_add_u32 v18, s34, v16
    v_mul_u32_u24 v18, 320, v18
    v_mul_u32_u24 v19, 160, v17
    v_add_u32 v18, v18, v19
    s_mov_b32 s34, {ST}
    v_lshlrev_b32 v19, 4, v1
    s_lshl_b32 s35, s22, 12
    s_add_u32 s35, s35, {UF}
    """)
    for i in range(5):
        k(f"buffer_load_dwordx4 v[{SR+6*i}:{SR+6*i+3}], v18, s[16:19], s34 offen offset:{32*i}")
        k(f"buffer_load_dwordx2 v[{SR+6*i+4}:{SR+6*i+5}], v18, s[16:19], s34 offen offset:{32*i+16}")
    for T in range(4):
        k(f"buffer_load_dwordx4 v[{UR+4*T}:{UR+4*T+3}], v19, s[16:19], s35 offen offset:{1024*T}")

    def acc_init():
        t = c.TF
        k("s_waitcnt vmcnt(4) lgkmcnt(0)")
        for q in range(6):
            k(f"v_add_f32 v{SR+q}, v{SR+q}, v{SR+6+q}")
            k(f"v_add_f32 v{SR+12+q}, v{SR+12+q}, v{SR+18+q}")
        for q in range(6):
            k(f"v_add_f32 v{SR+q}, v{SR+q}, v{SR+24+q}")
        for q in range(6):
            k(f"v_add_f32 v{SR+q}, v{SR+q}, v{SR+12+q}")
        for q in range(6):
            k(f"v_mov_b32 v{SR+6+q}, v{SR+q}")
        k("s_nop 0")
        for q in range(6):
            k(f"v_permlane32_swap_b32 v{SR+q}, v{SR+6+q}")
        inv = f32hex(1.0 / 640)
        for q in range(6):
            k(f"v_add_f32 v{SR+q}, v{SR+q}, v{SR+6+q}")
        for q in range(6):
            k(f"v_mul_f32 v{SR+q}, {inv}, v{SR+q}")
        m1, e2, ez, ez2, ezg, ezs = [SR + q for q in range(6)]
        k(f"""
        v_fma_f32 v{t}, -v{m1}, v{m1}, v{e2}              ; var1
        v_add_f32 v{t}, {f32hex(1e-5)}, v{t}
        v_rsq_f32 v{t+1}, v{t}                            ; r1
        v_sqrt_f32 v{t+2}, v{t}                           ; 1/r1
        v_mul_f32 v{t+3}, s40, v{m1}
        v_sub_f32 v{t+3}, v{ez}, v{t+3}                   ; E[(x-mu)g]
        v_mul_f32 v{t+4}, s41, v{m1}
        v_fma_f32 v{t+4}, -2.0, v{ezg}, v{t+4}
        v_fma_f32 v{t+4}, v{m1}, v{t+4}, v{ez2}           ; E[((x-mu)g)^2]
        v_mul_f32 v{t+5}, s44, v{m1}
        v_sub_f32 v{t+5}, v{ezs}, v{t+5}
        v_mov_b32 v{t+6}, s42
        v_fma_f32 v{t+6}, v{t+1}, v{t+3}, v{t+6}          ; mu2
        v_mul_f32 v{t+7}, v{t+1}, v{t+4}
        v_fma_f32 v{t+7}, 2.0, v{t+5}, v{t+7}
        v_mov_b32 v{t+8}, s43
        v_fma_f32 v{t+7}, v{t+1}, v{t+7}, v{t+8}          ; E[h2^2]
        v_fma_f32 v{t+7}, -v{t+6}, v{t+6}, v{t+7}         ; var2
        v_max_f32 v{t+7}, 0, v{t+7}
        v_add_f32 v{t+7}, {f32hex(1e-5)}, v{t+7}
        v_rsq_f32 v{t+8}, v{t+7}                          ; r2
        v_sqrt_f32 v{t+9}, v{t+7}                         ; 1/r2
        s_nop 0
        v_mul_f32 v{AR}, v{t+1}, v{t+8}                   ; a = r1 r2
        v_sub_f32 v{t+10}, 0, v{m1}                       ; b1 = -mu1
        v_mov_b32 v{t+11}, v{t+2}                         ; b2 = 1/r1
        v_mul_f32 v{t+12}, v{t+6}, v{t+2}
        v_sub_f32 v{t+12}, 0, v{t+12}                     ; b3 = -mu2/r1
        v_mul_f32 v{t+13}, v{t+2}, v{t+9}                 ; b4 = 1/(r1 r2)
        s_mov_b32 s36, 0xffff0000
        s_mov_b32 s37, 0xffff
        """)
        for i in range(4):
            b_, hi, lo = t + 10 + i, t + 16 + i, t + 20 + i
            k(f"""
            v_cvt_pk_bf16_f32 v{hi}, v{b_}, v{b_}
            v_and_b32 v{t+24}, s36, v{hi}
            v_sub_f32 v{t+24}, v{b_}, v{t+24}
            v_cvt_pk_bf16_f32 v{lo}, v{t+24}, v{t+24}
            """)
        h1, h2, h3, h4 = [t + 16 + i for i in range(4)]
        l1, l2, l3, l4 = [t + 20 + i for i in range(4)]
        k(f"""
        v_bfi_b32 v{t+26}, s37, v{h1}, v{l1}
        v_bfi_b32 v{t+27}, s37, v{h1}, v{h2}
        v_bfi_b32 v{t+28}, s37, v{l2}, v{h2}
        v_bfi_b32 v{t+29}, s37, v{h3}, v{l3}
        v_bfi_b32 v{t+30}, s37, v{h3}, v{h4}
        v_and_b32 v{t+31}, s37, v{l4}
        v_cmp_gt_u32 vcc, 32, v1
        s_nop 1
        v_cndmask_b32 v{EX}, v{t+30}, v{t+26}, vcc
        v_cndmask_b32 v{EX+1}, v{t+31}, v{t+27}, vcc
        v_cndmask_b32 v{EX+2}, 0, v{t+28}, vcc
        v_cndmask_b32 v{EX+3}, 0, v{t+29}, vcc
        s_waitcnt vmcnt(0)
        s_nop 0
        """)
        for T in range(4):
            a = c.ACC + 16 * T
            k(f"v_mfma_f32_32x32x16_bf16 v[{a}:{a+15}], v[{UR+4*T}:{UR+4*T+3}], v[{EX}:{EX+3}], 0")

    gemm_compute(k, c, acc_init=acc_init)
    A = c.ACC
    c0 = -2.0 * LOG2E * (2.0 / 3.141592653589793) ** 0.5
    c1 = c0 * 0.044715
    k(f"""
    s_mul_i32 s34, s23, 108
    s_lshl_b32 s35, s22, 3
    s_add_u32 s34, s34, s35
    s_lshl_b32 s34, s34, 10
    s_add_u32 s34, s34, {HF}
    v_mov_b32 v{AR+1}, v{AR}
    v_mov_b32 v{AR+2}, {f32hex(c0)}
    v_mov_b32 v{AR+3}, {f32hex(c0)}
    v_mov_b32 v{AR+4}, {f32hex(c1)}
    v_mov_b32 v{AR+5}, {f32hex(c1)}
    v_mov_b32 v{AR+6}, 1.0
    v_mov_b32 v{AR+7}, 1.0
    s_mov_b32 s38, 0
    """)
    for T in range(4):
        if T == 2:
            k("s_cmp_eq_u32 s22, 13\ns_cbranch_scc1 L_k4_done\ns_add_u32 s34, s34, 4096")
        for u in range(2):
            a = A + T * 16 + u * 8
            t = 84 + (u % 2) * 16
            o = 116 + (u % 2) * 4
            for j in range(4):
                x = a + 2 * j
                k(f"v_pk_mul_f32 v[{x}:{x+1}], v[{x}:{x+1}], v[{AR}:{AR+1}]")
            for j in range(4):
                x = a + 2 * j
                k(f"v_pk_mul_f32 v[{t+2*j}:{t+2*j+1}], v[{x}:{x+1}], v[{x}:{x+1}]")
            for j in range(4):
                k(f"v_pk_fma_f32 v[{t+2*j}:{t+2*j+1}], v[{t+2*j}:{t+2*j+1}], v[{AR+4}:{AR+5}], v[{AR+2}:{AR+3}]")
            for j in range(4):
                x = a + 2 * j
                k(f"v_pk_mul_f32 v[{t+2*j}:{t+2*j+1}], v[{t+2*j}:{t+2*j+1}], v[{x}:{x+1}]")
            for j in range(8):
                k(f"v_exp_f32 v{t+j}, v{t+j}")
            for j in range(4):
                k(f"v_pk_add_f32 v[{t+2*j}:{t+2*j+1}], v[{t+2*j}:{t+2*j+1}], v[{AR+6}:{AR+7}]")
            for j in range(8):
                k(f"v_rcp_f32 v{t+j}, v{t+j}")
            for j in range(4):
                x = a + 2 * j
                k(f"v_pk_mul_f32 v[{x}:{x+1}], v[{x}:{x+1}], v[{t+2*j}:{t+2*j+1}]")
            for j in range(4):
                x = a + 2 * j
                k(f"v_cvt_pk_bf16_f32 v{o+j}, v{x}, v{x+1}")
            k(f"buffer_store_dwordx4 v[{o}:{o+3}], v{c.vL16}, s[16:19], s34 offen offset:{1024*((2*T+u)%4)}")
    k.label("L_k4_done")
    stamp_flush(k, 4, 4)
    k.label("L_k4_kernel_end")
    k("s_endpgm")
    return k, (c.GRID, 384, c.LDS)


def gen_k5():
    k = Kernel("k5_kernel")
    c = mkcfg(MT=3, NT=2, KS=6, NCH=18, S=5, AHEAD=3, LB=1024, WSTRIDE=1280, PER=28, GRID=224)
    c.vA, c.vAc, c.vT, c.vTc, c.vL16, c.tmp = 2, 4, 6, 7, 8, 10
    c.ACC, c.TF, c.WF = 20, 52, 100
    XR = 196
    gemm_prologue_ids(k, c)
    k(f"""
    s_load_dwordx2 s[8:9], s[0:1], {B_W2}
    s_load_dwordx2 s[40:41], s[0:1], {OUT}
    s_load_dwordx2 s[44:45], s[0:1], {B_B2}
    s_cmp_ge_u32 s20, 220
    s_cbranch_scc1 L_k5_kernel_end
    s_mul_i32 s21, s20, 205
    s_lshr_b32 s21, s21, 11
    s_mul_i32 s22, s21, 10
    s_sub_u32 s22, s20, s22
    s_mul_i32 s33, s21, 3
    s_add_u32 s23, s33, s3
    s_waitcnt lgkmcnt(0)
    """)
    srd(k, 16, 4, WS_BYTES)
    k(f"""
    s_cmp_lt_u32 s3, 3
    s_cbranch_scc1 L_k5_compute
    s_cmp_eq_u32 s3, 3
    s_cbranch_scc1 L_k5_wload
    v_lshlrev_b32 v5, 4, v1
    """)
    tok_srd(k, c, HF, "s33")
    gemm_loader(k, c, "tok", 5, "t")
    stamp_flush(k, 5, 4)
    k("s_endpgm")
    k.label("L_k5_wload")
    srd(k, 8, 8, 1728 * 1280)
    srd(k, 44, 44, 1280)
    k(f"""
    v_lshlrev_b32 v2, 2, v1
    s_lshl_b32 s34, s22, 8
    s_add_u32 s35, s34, {MODF + 5*2560}
    s_mov_b32 m0, 0
    s_nop 0
    buffer_load_dword v2, s[16:19], s35 offen lds
    s_lshl_b32 s34, s22, 7
    s_mov_b32 m0, 256
    s_nop 0
    buffer_load_dword v2, s[44:47], s34 offen lds
    s_mov_b32 s24, 1280
    """)
    dma_lane_off(k, 5, 1, 3, 4, 128, "s24")
    k(f"""
    v_add_u32 v5, s34, v5
    s_mov_b32 s29, {8*1280}
    """)
    gemm_loader(k, c, "lin", 5, "w")
    stamp_flush(k, 5, 4)
    k("s_endpgm")
    k.label("L_k5_compute")
    srd(k, 40, 40, 2621440)
    k(f"""
    v_lshlrev_b32 v14, 4, v1
    s_min_u32 s34, s23, 63
    s_mul_i32 s34, s34, 40
    s_lshl_b32 s35, s22, 2
    s_add_u32 s34, s34, s35
    s_lshl_b32 s34, s34, 10
    s_add_u32 s34, s34, {X1F}
    """)
    for i in range(4):
        k(f"buffer_load_dwordx4 v[{XR+4*i}:{XR+4*i+3}], v14, s[16:19], s34 offen offset:{1024*i}")
    gemm_compute(k, c)
    A = c.ACC
    k(f"""
    s_cmp_ge_u32 s23, 64
    s_cbranch_scc1 L_k5_kernel_end
    v_and_b32 v12, 31, v1
    v_lshrrev_b32 v13, 5, v1
    v_lshlrev_b32 v2, 5, v13
    v_lshlrev_b32 v3, 4, v13
    v_mul_u32_u24 v14, 1280, v12
    v_lshl_add_u32 v14, v13, 4, v14
    s_mul_i32 s34, s23, 40960
    s_lshl_b32 s35, s22, 7
    s_add_u32 s34, s34, s35
    s_mov_b32 s36, 0xffff0000
    """)
    TB = 52
    for i in range(4):
        T, u = i // 2, i % 2
        b = TB + 12 * i
        o = 32 * T + 16 * u
        k(f"ds_read_b128 v[{b}:{b+3}], v2 offset:{o*4}")
        k(f"ds_read_b128 v[{b+4}:{b+7}], v2 offset:{o*4+16}")
        k(f"ds_read_b128 v[{b+8}:{b+11}], v3 offset:{256+o*2}")
    k("s_waitcnt lgkmcnt(0)")
    for i in range(4):
        T, u = i // 2, i % 2
        b = TB + 12 * i
        a = A + T * 16 + u * 8
        xr = XR + 4 * i
        o1 = 120 + 4 * i
        for j in range(4):
            t = 104 + (j % 2) * 4
            k(f"""
            v_lshlrev_b32 v{t}, 16, v{b+8+j}
            v_and_b32 v{t+1}, s36, v{b+8+j}
            v_lshlrev_b32 v{t+2}, 16, v{xr+j}
            v_and_b32 v{t+3}, s36, v{xr+j}
            v_pk_add_f32 v[{t}:{t+1}], v[{t}:{t+1}], v[{a+2*j}:{a+2*j+1}]
            v_pk_fma_f32 v[{t}:{t+1}], v[{t}:{t+1}], v[{b+2*j}:{b+2*j+1}], v[{t+2}:{t+3}]
            v_cvt_pk_bf16_f32 v{o1+j}, v{t}, v{t+1}
            """)
        k(f"buffer_store_dwordx4 v[{o1}:{o1+3}], v14, s[40:43], s34 offen offset:{64*T+32*u}")
    stamp_flush(k, 5, 4)
    k.label("L_k5_kernel_end")
    k("s_endpgm")
    return k, (c.GRID, 320, c.LDS)


KERNELS = [gen_k0, gen_k1, gen_k2, gen_k3, gen_k4, gen_k5]


def build(path):
    ks = [g() for g in KERNELS]
    ok = True
    for k, _ in ks:
        ok &= k.check()
    hdr = open(f"cdna_kernels/{NAME}.s.ref").read().split("; Override launch")[0]
    out = hdr
    for k, (grid, block, lds) in ks:
        out += f"; @launch kernel={k.name} grid=({grid},1,1) block=({block},1,1) lds={lds}\n"
    out += '.amdgcn_target "amdgcn-amd-amdhsa--gfx950"\n.text\n'
    seen = set()
    for k, _ in ks:
        if k.name in seen:
            continue
        seen.add(k.name)
        out += f".globl {k.name}\n.p2align 8\n.type {k.name},@function\n{k.name}:\n{k.text()}\n"
    out += '.section .rodata,"a"\n'
    seen = set()
    for k, _ in ks:
        if k.name in seen:
            continue
        seen.add(k.name)
        out += descriptor(k)
    open(path, "w").write(out)
    for k, g in ks:
        print(k.name, g, "instrs", len(k.ins), "vgpr", k.maxreg("v") + 1, "agpr", k.maxreg("a") + 1, "sgpr", k.maxreg("s") + 1)
    return ok


if __name__ == "__main__":
    p = sys.argv[1] if len(sys.argv) > 1 else f"cdna_kernels/{NAME}.s"
    ok = build(p)
    print("hazard check", "OK" if ok else "FAILED")
```
